```python
import torch

def _softmax(x, axis=-1):
    return torch.softmax(x, dim=axis)
def _gelu(x):
    return torch.nn.functional.gelu(x, approximate="tanh")
def _silu(x):
    return torch.nn.functional.silu(x)
def _sigmoid(x):
    return torch.sigmoid(x)
def _layernorm(x, axis=-1, eps=1e-5):
    m = x.mean(dim=axis, keepdim=True)
    v = x.var(dim=axis, keepdim=True, unbiased=False)
    return (x - m) / torch.sqrt(v + eps)
def _scatter_add(tgt, idx, src, axis=0):
    return tgt.clone().index_add_(axis, idx, src)
def _segment_sum(src, seg, n):
    out = torch.zeros((n,) + src.shape[1:], dtype=src.dtype)
    return out.index_add_(0, seg, src)
def _pad(x, pw):
    flat = tuple(v for pair in reversed(pw) for v in pair)
    return torch.nn.functional.pad(x, flat)

kernel_name = 'standalone__kv_cache_quant_int4_int2_kv_with_per_channel_or_per_token_scales__decode'

def setup_inputs():

    _w = (lambda a: (lambda t: t.to(torch.bfloat16) if t.is_floating_point() else t)(torch.as_tensor(a)))
    B = 1
    Sq = 1
    Skv = 16384
    Hq = 32
    Hkv = 8
    Dh = 128
    bits = 3
    G = -1
    if G <= 0 or G >= Skv:
        G = max(1, Skv // 2)
    Skv = (Skv // G) * G
    ngk = Skv // G
    qmax = (1 << bits) - 1
    return {
        "q": _w((lambda *s: torch.randn(*s, dtype=torch.bfloat16) * 1.6)(B, Hq, Sq, Dh)),
        "qk": _w(torch.randint(0, qmax + 1, (B, Hkv, Skv, Dh)).to(torch.int32)),
        "qv": _w(torch.randint(0, qmax + 1, (B, Hkv, Skv, Dh)).to(torch.int32)),
        "k_scales": _w(torch.abs((lambda *s: torch.randn(*s, dtype=torch.bfloat16) * 1.6)(B, Hkv, ngk, Dh)) * 0.05 + 0.02),
        "k_zeros": _w((lambda *s: torch.randn(*s, dtype=torch.bfloat16) * 1.6)(B, Hkv, ngk, Dh) + float(qmax) / 2.0),
        "v_scales": _w(torch.abs((lambda *s: torch.randn(*s, dtype=torch.bfloat16) * 0.05)(B, Hkv, Skv, 1)) * 0.05 + 0.02),
        "v_zeros": _w((lambda *s: torch.randn(*s, dtype=torch.bfloat16) * 0.05)(B, Hkv, Skv, 1) + float(qmax) / 2.0),
    }

def reference(q, qk, qv, k_scales, k_zeros, v_scales, v_zeros):
    B, Hq, Sq, Dh = q.shape
    Hkv, Skv = qk.shape[1], qk.shape[2]
    ngk = k_scales.shape[2]
    G = Skv // ngk
    ks = (lambda x, n, axis: torch.repeat_interleave(x, n, dim=axis))(k_scales, G, axis=2)
    kz = (lambda x, n, axis: torch.repeat_interleave(x, n, dim=axis))(k_zeros, G, axis=2)
    k = ((lambda x, dt: x.to(dt))(qk, q.dtype) - kz) * ks
    v = ((lambda x, dt: x.to(dt))(qv, q.dtype) - v_zeros) * v_scales
    rep = Hq // Hkv
    if rep > 1:
        k = (lambda x, n, axis: torch.repeat_interleave(x, n, dim=axis))(k, rep, axis=1)
        v = (lambda x, n, axis: torch.repeat_interleave(x, n, dim=axis))(v, rep, axis=1)
    scale = float(Dh) ** -0.5
    logits = torch.einsum("bhqd,bhkd->bhqk", q, k) * scale
    p = _softmax(logits, axis=-1)
    o = torch.einsum("bhqk,bhkd->bhqd", p, v)
    return o
```

```python
import sys, argparse, struct

KN = "standalone__kv_cache_quant_int4_int2_kv_with_per_channel_or_per_token_scales__decode_kernel"
HEADER = """; Kernarg layout (80 bytes, ptrs only, base s[0:1]):
"""

class G:
    def __init__(self):
        self.L = []
        self.vm = []
    def e(self, s): self.L.append(s)
    def c(self, s): self.L.append("; " + s)
    def vmem(self, s, tag):
        self.L.append(s); self.vm.append(tag)
    def wait(self, tag):
        if tag not in self.vm: return False
        idx = len(self.vm) - 1 - self.vm[::-1].index(tag)
        n = len(self.vm) - 1 - idx
        assert n <= 63
        self.e(f"s_waitcnt vmcnt({n})")
        self.vm = self.vm[idx + 1:]
        return True

V_LANE=0; V_K=1; V_V=2; V_T0=3; V_T1=4; V_M1=5; V_BIAS=6; V_L=7
QP=8
S=24
ACC=40
VS=72; VZ=80
X=88
R=96
CACC=100
RING=104
S_WAVE=3
S_Q=4; S_QK=6; S_QV=8; S_KS=10; S_KZ=12; S_VS=14; S_VZ=16; S_OUT=18; S_DBG=20; S_WS=22
SRD_K=24; SRD_V=28; SRD_A=32; SRD_B=36; SRD_C=40; SRD_VS=44; SRD_VZ=48; SRD_W=52; SRD_O=56; SRD_D=60
S_HI=64; S_C=65; S_PERM=66; S_8192=67; S_16384=68; S_24576=69; S_T0=70; S_T1=71; S_T2=72; S_HK=73; S_SPLIT=74; S_NEG=75
S_XCC=76; S_FAST=77
S_ST=80
CEXP = 0.08838834764831845 * 1.4426950408889634
def f2u(x): return struct.unpack("<I", struct.pack("<f", x))[0]

LDS_M=0
LDS_Lr=128
LDS_B=256
LDS_O=512
LDS_SIZE=512+8*2048

def srd(g, dst, base, off_sreg, size):
    if off_sreg is None:
        g.e(f"s_mov_b32 s{dst}, s{base}"); g.e(f"s_mov_b32 s{dst+1}, s{base+1}")
    else:
        g.e(f"s_add_u32 s{dst}, s{base}, s{off_sreg}"); g.e(f"s_addc_u32 s{dst+1}, s{base+1}, 0")
    g.e(f"s_mov_b32 s{dst+2}, {size}")
    g.e(f"s_mov_b32 s{dst+3}, 0x20000")

def kernel_begin(g, name):
    g.e(f".globl {name}"); g.e(".p2align 8"); g.e(f".type {name},@function"); g.e(f"{name}:")

def kernel_desc(g, name, nv, ns=96):
    nv8 = (nv + 7) // 8 * 8
    g.e(".p2align 6")
    g.e(f".amdhsa_kernel {name}")
    g.e(f"  .amdhsa_next_free_vgpr {nv8}")
    g.e(f"  .amdhsa_next_free_sgpr {ns}")
    g.e(f"  .amdhsa_accum_offset {min(256,(nv+3)//4*4)}")
    g.e("  .amdhsa_group_segment_fixed_size 0")
    g.e("  .amdhsa_kernarg_size 80")
    g.e("  .amdhsa_user_sgpr_count 2")
    g.e("  .amdhsa_user_sgpr_kernarg_segment_ptr 1")
    g.e("  .amdhsa_system_sgpr_workgroup_id_x 1")
    g.e(".end_amdhsa_kernel")

def stamp(g, o, k):
    if o.stamps: g.e(f"s_memrealtime s[{S_ST+2*k}:{S_ST+2*k+1}]")
def stamp_store(g, o):
    if not o.stamps: return
    g.e("s_waitcnt lgkmcnt(0)")
    g.e(f"s_lshl_b32 s{S_T0}, s2, 3")
    g.e(f"s_add_u32 s{S_T0}, s{S_T0}, s{S_WAVE}")
    g.e(f"s_lshl_b32 s{S_T0}, s{S_T0}, 5")
    g.e(f"s_add_u32 s{S_T0}, s{S_T0}, 0x400000")
    srd(g, SRD_A, S_WS, S_T0, 32)
    g.e("s_mov_b64 exec, 1")
    for k in range(8): g.e(f"v_mov_b32 v{40+k}, s{S_ST+2*k}")
    g.e("v_mov_b32 v48, 0")
    g.e(f"buffer_store_dwordx4 v[40:43], v48, s[{SRD_A}:{SRD_A+3}], 0 offen")
    g.e(f"buffer_store_dwordx4 v[44:47], v48, s[{SRD_A}:{SRD_A+3}], 0 offen offset:16")
    g.e("s_waitcnt vmcnt(0)")

def consumer_setup(g, o):
    g.e(f"s_lshl_b32 s{S_T0}, s2, 12")
    srd(g, SRD_W, S_WS, S_T0, 4096)
    g.e(f"s_lshl_b32 s{S_T0}, s2, 5")
    srd(g, SRD_O, S_OUT, S_T0, 32)
    g.e(f"v_lshrrev_b32 v8, 2, v{V_LANE}")
    g.e(f"v_and_b32 v9, 3, v{V_LANE}")
    g.e(f"v_lshlrev_b32 v10, 7, v8")
    g.e(f"v_lshl_add_u32 v11, v9, 4, v10")
    g.e(f"v_lshrrev_b32 v12, 4, v{V_LANE}")
    g.e(f"v_and_b32 v13, 1, v12")
    g.e(f"v_lshrrev_b32 v12, 1, v12")
    g.e(f"v_lshl_or_b32 v12, v13, 1, v12")
    g.e(f"v_lshl_add_u32 v12, v9, 2, v12")
    g.e(f"v_lshlrev_b32 v12, 1, v12")

def ready_total(g, src, dst):
    g.e(f"v_sad_u8 v{dst}, v{src}, 0, 0")
    g.e(f"v_sad_u8 v{dst}, v{src+1}, 0, v{dst}")

def consumer(g, fused, pfx, o):
    A=16; B=20; T0=24; T1=26; t=30
    g.c("---- combine 32 records, store 16 outputs ----")
    if fused:
        RD=14
        g.e(f"s_mov_b32 s{S_T2}, 0x40000")
        g.e(f"s_waitcnt vmcnt(0)")
        g.e(f"v_mov_b32 v{RD}, v{o.V_RDY}"); g.e(f"v_mov_b32 v{RD+1}, v{o.V_RDY+1}")
        g.e(f"{pfx}_rdy:")
        ready_total(g, RD, 13)
        g.e(f"v_cmp_gt_u32 vcc, 32, v13")
        g.e(f"s_cbranch_vccz {pfx}_poll")
        g.e(f"s_sub_u32 s{S_T2}, s{S_T2}, 1")
        g.e(f"s_cbranch_scc1 {pfx}_go")
        g.e(f"buffer_load_dwordx2 v[{RD}:{RD+1}], off, s[{SRD_D}:{SRD_D+3}], 0 sc1")
        g.e(f"s_waitcnt vmcnt(0)")
        g.e(f"s_branch {pfx}_rdy")
    g.e(f"{pfx}_poll:")
    fl = "sc1" if fused else ""
    g.e(f"buffer_load_dwordx4 v[{A}:{A+3}], v11, s[{SRD_W}:{SRD_W+3}], 0 offen {fl}")
    g.e(f"buffer_load_dwordx4 v[{B}:{B+3}], v11, s[{SRD_W}:{SRD_W+3}], 0 offen offset:2048 {fl}")
    g.e(f"buffer_load_dwordx2 v[{T0}:{T0+1}], v10, s[{SRD_W}:{SRD_W+3}], 0 offen offset:64 {fl}")
    g.e(f"buffer_load_dwordx2 v[{T1}:{T1+1}], v10, s[{SRD_W}:{SRD_W+3}], 0 offen offset:2112 {fl}")
    g.e("s_waitcnt vmcnt(0)")
    if fused:
        g.e(f"v_max3_u32 v{t}, v{A}, v{A+1}, v{A+2}")
        g.e(f"v_max3_u32 v{t+1}, v{A+3}, v{B}, v{B+1}")
        g.e(f"v_max3_u32 v{t}, v{t}, v{B+2}, v{B+3}")
        g.e(f"v_max3_u32 v{t+1}, v{t+1}, v{T0}, v{T0+1}")
        g.e(f"v_max3_u32 v{t}, v{t}, v{T1}, v{T1+1}")
        g.e(f"v_max_u32 v{t}, v{t}, v{t+1}")
        g.e(f"v_cmp_eq_u32 vcc, -1, v{t}")
        g.e(f"s_cbranch_vccz {pfx}_go")
        g.e(f"s_sub_u32 s{S_T2}, s{S_T2}, 1")
        g.e(f"s_cbranch_scc0 {pfx}_poll")
        g.e(f"{pfx}_go:")
        stamp(g,o,6)
    g.e(f"v_max_f32 v{t}, v{T0+1}, v{T1+1}")
    g.e("s_nop 1")
    g.e(f"v_max_f32_dpp v{t}, v{t}, v{t} row_ror:4 row_mask:0xf bank_mask:0xf")
    g.e("s_nop 1")
    g.e(f"v_max_f32_dpp v{t}, v{t}, v{t} row_ror:8 row_mask:0xf bank_mask:0xf")
    g.e(f"s_nop 0")
    g.e(f"v_mov_b32 v{t+1}, v{t}")
    g.e("s_nop 1")
    g.e(f"v_permlane16_swap_b32 v{t+1}, v{t}")
    g.e(f"v_max_f32 v{t}, v{t}, v{t+1}")
    g.e(f"v_mov_b32 v{t+1}, v{t}")
    g.e("s_nop 1")
    g.e(f"v_permlane32_swap_b32 v{t+1}, v{t}")
    g.e(f"v_max_f32 v{t}, v{t}, v{t+1}")
    g.e(f"v_sub_f32 v{T0+1}, v{T0+1}, v{t}")
    g.e(f"v_sub_f32 v{T1+1}, v{T1+1}, v{t}")
    g.e(f"v_exp_f32 v{T0+1}, v{T0+1}")
    g.e(f"v_exp_f32 v{T1+1}, v{T1+1}")
    g.e("s_nop 0")
    g.e(f"v_mul_f32 v{T0}, v{T0}, v{T0+1}")
    for e in range(4): g.e(f"v_mul_f32 v{A+e}, v{A+e}, v{T0+1}")
    g.e(f"v_fmac_f32 v{T0}, v{T1}, v{T1+1}")
    for e in range(4): g.e(f"v_fmac_f32 v{A+e}, v{B+e}, v{T1+1}")
    g.e(f"v_add_f32_dpp v{T0}, v{T0}, v{T0} row_ror:4 row_mask:0xf bank_mask:0xf")
    g.e("s_nop 0")
    g.e(f"v_permlane32_swap_b32 v{A}, v{A+1}")
    g.e(f"v_permlane32_swap_b32 v{A+2}, v{A+3}")
    g.e(f"v_add_f32_dpp v{T0}, v{T0}, v{T0} row_ror:8 row_mask:0xf bank_mask:0xf")
    g.e(f"v_add_f32 v{A}, v{A}, v{A+1}")
    g.e(f"v_add_f32 v{A+2}, v{A+2}, v{A+3}")
    g.e(f"v_mov_b32 v{t}, v{T0}")
    g.e("s_nop 1")
    g.e(f"v_permlane16_swap_b32 v{A}, v{A+2}")
    g.e(f"v_permlane16_swap_b32 v{t}, v{T0}")
    g.e(f"v_add_f32 v{A}, v{A}, v{A+2}")
    g.e(f"v_add_f32 v{T0}, v{T0}, v{t}")
    g.e("s_nop 0")
    g.e(f"v_mov_b32 v{t}, v{T0}")
    g.e(f"v_add_f32_dpp v{A}, v{A}, v{A} row_ror:4 row_mask:0xf bank_mask:0xf")
    g.e("s_nop 0")
    g.e(f"v_permlane32_swap_b32 v{t}, v{T0}")
    g.e(f"v_add_f32_dpp v{A}, v{A}, v{A} row_ror:8 row_mask:0xf bank_mask:0xf")
    g.e(f"v_add_f32 v{T0}, v{T0}, v{t}")
    g.e(f"v_rcp_f32 v{T0}, v{T0}")
    g.e("s_nop 0")
    g.e(f"v_mul_f32 v{A}, v{A}, v{T0}")
    g.e(f"v_cvt_pk_bf16_f32 v{A}, v{A}, v{A}")
    g.e(f"s_mov_b32 exec_lo, 0x000f000f")
    g.e(f"s_mov_b32 exec_hi, 0x000f000f")
    g.e(f"buffer_store_short v{A}, v12, s[{SRD_O}:{SRD_O+3}], 0 offen {o.outfl}")

def publish(g, o, data, addr, off, lbl):
    if o.fused and o.fast==1:
        g.e(f"s_cmp_eq_u32 s{S_FAST}, 1")
        g.e(f"s_cbranch_scc1 {lbl}_f")
        g.e(f"buffer_store_dwordx4 v[{data}:{data+3}], v{addr}, s[{SRD_W}:{SRD_W+3}], 0 offen offset:{off} sc1")
        g.e(f"s_branch {lbl}_d")
        g.e(f"{lbl}_f:")
        g.e(f"buffer_store_dwordx4 v[{data}:{data+3}], v{addr}, s[{SRD_W}:{SRD_W+3}], 0 offen offset:{off}")
        g.e(f"{lbl}_d:")
    elif o.fast==2:
        g.e(f"buffer_store_dwordx4 v[{data}:{data+3}], v{addr}, s[{SRD_W}:{SRD_W+3}], 0 offen offset:{off}")
    else:
        g.e(f"buffer_store_dwordx4 v[{data}:{data+3}], v{addr}, s[{SRD_W}:{SRD_W+3}], 0 offen offset:{off} sc1")

def main_kernel(g, o):
    fused = o.fused
    NS = o.nslots
    ldf = o.ldflags
    kernel_begin(g, o.main_name)
    g.e("s_cmp_ge_u32 s2, 256")
    g.e("s_cbranch_scc1 L_end")
    stamp(g,o,0)
    g.e(f"s_load_dwordx16 s[4:19], s[0:1], 0")
    g.e(f"s_load_dwordx4 s[20:23], s[0:1], 64")
    if o.xmap:
        g.e("s_and_b32 s3, s2, 7"); g.e("s_lshl_b32 s3, s3, 5"); g.e("s_lshr_b32 s2, s2, 3"); g.e("s_add_u32 s2, s2, s3")
    g.e(f"v_lshrrev_b32 v1, 6, v0")
    g.e(f"v_and_b32 v0, 63, v0")
    g.e(f"v_readfirstlane_b32 s{S_WAVE}, v1")
    g.e("v_bfe_u32 v3, v0, 2, 1")
    g.e("v_and_b32 v4, 3, v0")
    g.e(f"v_lshlrev_b32 v{V_K}, 12, v3")
    g.e(f"v_lshl_add_u32 v{V_K}, v4, 9, v{V_K}")
    g.e("v_lshrrev_b32 v3, 3, v0")
    g.e(f"v_lshl_add_u32 v{V_K}, v3, 4, v{V_K}")
    g.e(f"s_lshl_b32 s{S_T0}, s2, 9")
    g.e(f"s_lshl_b32 s{S_T1}, s{S_WAVE}, 6")
    g.e(f"s_add_u32 s{S_T0}, s{S_T0}, s{S_T1}")
    g.e(f"s_lshl_b32 s{S_T1}, s{S_T0}, 9")
    g.e(f"s_lshl_b32 s{S_T2}, s{S_T0}, 1")
    g.e(f"s_mov_b32 s{S_8192}, 8192")
    g.e(f"s_mov_b32 s{S_16384}, 16384")
    g.e(f"s_mov_b32 s{S_24576}, 24576")
    g.e("v_lshrrev_b32 v3, 4, v0")
    g.e(f"v_and_b32 v{X}, 15, v0")
    g.e(f"v_lshlrev_b32 v{V_V}, 12, v3")
    g.e(f"v_lshl_add_u32 v{V_V}, v{X}, 4, v{V_V}")
    g.e(f"v_lshlrev_b32 v{X+1}, 4, v3")
    g.e(f"v_lshl_add_u32 v{X+2}, v4, 8, v{X+1}")
    g.e(f"v_bfe_i32 v{V_M1}, v0, 2, 1")
    g.e(f"v_and_b32 v{V_M1}, 0xffff0000, v{V_M1}")
    g.e(f"s_lshr_b32 s{S_HK}, s2, 5")
    g.e(f"s_and_b32 s{S_SPLIT}, s2, 31")
    g.e(f"s_mov_b32 s{S_HI}, 0xffff0000")
    g.e(f"s_mov_b32 s{S_C}, 0x{f2u(CEXP):08x}")
    g.e(f"s_mov_b32 s{S_PERM}, 0x07060302")
    g.e(f"s_mov_b32 s{S_NEG}, 0x80008000")
    if fused:
        g.e(f"s_getreg_b32 s{S_XCC}, hwreg(HW_REG_XCC_ID, 0, 3)")
    g.e("s_waitcnt lgkmcnt(0)")
    srd(g, SRD_K, S_QK, S_T1, 32768)

    loads = []
    sok = {0:"0",8192:f"s{S_8192}",16384:f"s{S_16384}",24576:f"s{S_24576}"}
    for up in range(4):
        it = [(j,u) for j in range(4) for u in range(2)] if o.korder=="ju" else [(j,u) for u in range(2) for j in range(4)]
        for (j,u) in it:
            loads.append((("K",up,j,u), f"v{V_K}, s[{SRD_K}:{SRD_K+3}], {sok[16384*(up>>1)+8192*u]} offen offset:{2048*(up&1)+128*j}"))
    units = [(0,0),(0,1),(1,0),(1,1)] if o.vunits=="w" else [(0,0),(1,0),(0,1),(1,1)]
    for (wp,half) in units:
        for s_ in range(8):
            loads.append((("V",wp,half,s_), f"v{V_V}, s[{SRD_V}:{SRD_V+3}], {sok[16384*wp]} offen offset:{512*s_+256*half}"))
    slot_of = {}
    free = [RING+4*i for i in range(NS)]
    state = {"next":0}
    def issue(n=1):
        k=0
        for _ in range(n):
            i = state["next"]
            if i >= len(loads) or not free: break
            tag, rest = loads[i]
            slot = free.pop(0)
            slot_of[tag] = slot
            g.vmem(f"buffer_load_dwordx4 v[{slot}:{slot+3}], {rest} {ldf}", tag)
            state["next"] += 1; k+=1
        return k
    def release(*tags):
        for t_ in tags: free.append(slot_of[t_])

    def other_srds():
        srd(g, SRD_V, S_QV, S_T1, 32768)
        srd(g, SRD_VS, S_VS, S_T2, 128)
        srd(g, SRD_VZ, S_VZ, S_T2, 128)
        g.e(f"s_lshl_b32 s{S_T0}, s{S_HK}, 10")
        srd(g, SRD_A, S_Q, S_T0, 1024)
        g.e(f"s_lshr_b32 s{S_T0}, s2, 4")
        g.e(f"s_lshl_b32 s{S_T0}, s{S_T0}, 8")
        srd(g, SRD_B, S_KS, S_T0, 256)
        srd(g, SRD_C, S_KZ, S_T0, 256)
        g.e(f"s_lshl_b32 s{S_T0}, s{S_HK}, 17")
        g.e(f"s_lshl_b32 s{S_T1}, s{S_SPLIT}, 7")
        g.e(f"s_add_u32 s{S_T0}, s{S_T0}, s{S_T1}")
        srd(g, SRD_W, S_WS, S_T0, 31*4096+128)
        if fused:
            g.e(f"s_lshl_b32 s{S_T0}, s{S_HK}, 5")
            srd(g, SRD_D, S_DBG, S_T0, 8)
    def clear():
        g.e(f"s_cmp_eq_u32 s{S_WAVE}, 0")
        g.e("s_cbranch_scc0 L_noclear")
        for k in range(4): g.e(f"v_mov_b32 v{R+k}, -1")
        g.e(f"v_lshrrev_b32 v{X+4}, 2, v0")
        g.e(f"v_and_b32 v{X+5}, 3, v0")
        g.e(f"v_lshlrev_b32 v{X+4}, 12, v{X+4}")
        g.e(f"v_lshl_add_u32 v{X+4}, v{X+5}, 4, v{X+4}")
        g.e(f"v_and_b32 v{X+5}, 31, v0")
        g.e(f"v_lshlrev_b32 v{X+5}, 12, v{X+5}")
        g.e(f"s_mov_b32 s{S_T0}, 65536")
        g.e(f"buffer_store_dwordx4 v[{R}:{R+3}], v{X+4}, s[{SRD_W}:{SRD_W+3}], 0 offen sc1")
        g.e(f"buffer_store_dwordx4 v[{R}:{R+3}], v{X+4}, s[{SRD_W}:{SRD_W+3}], s{S_T0} offen sc1")
        g.e(f"buffer_store_dwordx4 v[{R}:{R+3}], v{X+5}, s[{SRD_W}:{SRD_W+3}], 0 offen offset:64 sc1")
        g.e(f"s_and_b32 s{S_T0}, s{S_XCC}, 3")
        g.e(f"s_lshl_b32 s{S_T0}, s{S_T0}, 3")
        g.e(f"s_lshl_b32 s{S_T0}, 1, s{S_T0}")
        g.e(f"s_lshr_b32 s{S_T1}, s{S_XCC}, 2")
        g.e(f"s_lshl_b32 s{S_T1}, s{S_T1}, 2")
        g.e(f"v_mov_b32 v{X+6}, s{S_T0}")
        g.e("s_waitcnt vmcnt(0)")
        g.e(f"s_mov_b64 exec, 1")
        g.e(f"buffer_atomic_add v{X+6}, off, s[{SRD_D}:{SRD_D+3}], s{S_T1} sc1")
        g.e(f"s_mov_b64 exec, -1")
        g.e("L_noclear:")
    QR=ACC; KSR=ACC+16; KZR=S
    def vs_loads():
        for k in range(2):
            g.vmem(f"buffer_load_dwordx4 v[{VS+4*k}:{VS+4*k+3}], v{X+1}, s[{SRD_VS}:{SRD_VS+3}], 0 offen offset:{64*k}", "vs")
            g.vmem(f"buffer_load_dwordx4 v[{VZ+4*k}:{VZ+4*k+3}], v{X+1}, s[{SRD_VZ}:{SRD_VZ+3}], 0 offen offset:{64*k}", "vz")
    def small_loads():
        for j in range(4):
            g.vmem(f"buffer_load_dwordx4 v[{QR+4*j}:{QR+4*j+3}], v{X+2}, s[{SRD_A}:{SRD_A+3}], 0 offen offset:{64*j}", "q")
            g.vmem(f"buffer_load_dwordx4 v[{KSR+4*j}:{KSR+4*j+3}], v{X+1}, s[{SRD_B}:{SRD_B+3}], 0 offen offset:{64*j}", f"ks{j}")
        for j in range(4):
            g.vmem(f"buffer_load_dwordx4 v[{KZR+4*j}:{KZR+4*j+3}], v{X+1}, s[{SRD_C}:{SRD_C+3}], 0 offen offset:{64*j}", "kz")
        if o.vsearly: vs_loads()
    if o.kfirst:
        if fused and o.clearpos=="first":
            other_srds(); clear(); issue(32)
        else:
            issue(8); other_srds(); issue(24)
            if fused: clear_after=True
        if o.tlbw:
            g.vmem(f"buffer_load_dword v{X+7}, off, s[{SRD_V}:{SRD_V+3}], 0 {ldf}", "tlb")
        small_loads()
        if fused and o.clearpos!="first": clear()
    else:
        other_srds()
        if fused: clear()
        if o.tlbw:
            g.vmem(f"buffer_load_dword v{X+7}, off, s[{SRD_V}:{SRD_V+3}], 0 {ldf}", "tlb")
        small_loads()
        issue(32)
    stamp(g,o,1)
    if o.bar0: g.e("s_barrier")
    if not o.vsearly: vs_loads()
    issue(NS-32)
    g.c("---- q' ----")
    for j in range(4):
        g.wait(f"ks{j}")
        for i in range(0,4,2):
            for k in range(2):
                q=QR+4*j+i+k; ks=KSR+4*j+i+k; t=X+4*k
                g.e(f"v_lshlrev_b32 v{t}, 16, v{q}")
                g.e(f"v_and_b32 v{t+1}, s{S_HI}, v{q}")
                g.e(f"v_lshlrev_b32 v{t+2}, 16, v{ks}")
                g.e(f"v_and_b32 v{t+3}, s{S_HI}, v{ks}")
            for k in range(2):
                t=X+4*k
                g.e(f"v_mul_f32 v{t}, v{t}, v{t+2}")
                g.e(f"v_mul_f32 v{t+1}, v{t+1}, v{t+3}")
            for k in range(2):
                t=X+4*k
                g.e(f"v_and_b32 v{t+2}, v{V_M1}, v{t}")
                g.e(f"v_and_b32 v{t+3}, v{V_M1}, v{t+1}")
            for k in range(2):
                t=X+4*k
                g.e(f"v_sub_f32 v{t}, v{t}, v{t+2}")
                g.e(f"v_sub_f32 v{t+1}, v{t+1}, v{t+3}")
            for k in range(2):
                t=X+4*k
                g.e(f"v_perm_b32 v{QP+4*j+i+k}, v{t+1}, v{t}, s{S_PERM}")
    g.c("---- bias = q'.kz ----")
    if not g.wait("kz"): g.e("s_nop 1")
    for j in range(4):
        c = "0" if j==0 else f"v[{CACC}:{CACC+3}]"
        g.e(f"v_mfma_f32_16x16x32_bf16 v[{CACC}:{CACC+3}], v[{KZR+4*j}:{KZR+4*j+3}], v[{QP+4*j}:{QP+4*j+3}], {c}")
    stamp(g,o,2)
    g.c("---- QK ----")
    first=True
    for up in range(4):
        for j in range(4):
            g.wait(("K",up,j,1) if o.korder=="ju" else ("K",up,j,1))
            a=slot_of[("K",up,j,0)]; b=slot_of[("K",up,j,1)]
            for e in range(4): g.e(f"v_cvt_f32_i32 v{X+e}, v{a+e}")
            for e in range(4): g.e(f"v_cvt_f32_i32 v{X+4+e}, v{b+e}")
            for e in range(4): g.e(f"v_cvt_f32_i32_dpp v{X+e}, v{b+e} row_ror:8 row_mask:0xf bank_mask:0xc")
            for e in range(4): g.e(f"v_cvt_f32_i32_dpp v{X+4+e}, v{a+e} row_ror:8 row_mask:0xf bank_mask:0x3")
            if first:
                g.e(f"v_add_f32_dpp v{V_BIAS}, v{CACC}, v{CACC} row_ror:4 row_mask:0xf bank_mask:0xf")
                first=False
            for k in range(4): g.e(f"v_cvt_pk_bf16_f32 v{R+k}, v{X+2*k}, v{X+2*k+1}")
            release(("K",up,j,0),("K",up,j,1))
            k_=issue(2)
            if k_ < 2: g.e("s_nop 1")
            c = "0" if j==0 else f"v[{S+4*up}:{S+4*up+3}]"
            g.e(f"v_mfma_f32_16x16x32_bf16 v[{S+4*up}:{S+4*up+3}], v[{R}:{R+3}], v[{QP+4*j}:{QP+4*j+3}], {c}")
    issue(100)
    assert state["next"]==len(loads)
    if fused:
        o.V_RDY = free.pop(0)
        if o.rdy4:
            g.e(f"s_cmp_lt_u32 s{S_WAVE}, 4")
            g.e("s_cbranch_scc0 L_nordy")
            g.e(f"buffer_load_dwordx2 v[{o.V_RDY}:{o.V_RDY+1}], off, s[{SRD_D}:{SRD_D+3}], 0 sc1")
            g.e("L_nordy:")
        else:
            g.e(f"buffer_load_dwordx2 v[{o.V_RDY}:{o.V_RDY+1}], off, s[{SRD_D}:{SRD_D+3}], 0 sc1")
            g.vm.append("rdy")
    stamp(g,o,3)
    g.c("---- max ----")
    g.e("s_nop 6" if fused else "s_nop 7")
    for i in range(16):
        g.e(f"v_add_f32_dpp v{S+i}, v{S+i}, v{S+i} row_ror:4 row_mask:0xf bank_mask:0xf")
    m=V_T0; t=V_T1
    g.e(f"v_max3_f32 v{m}, v{S}, v{S+1}, v{S+2}")
    g.e(f"v_max3_f32 v{t}, v{S+3}, v{S+4}, v{S+5}")
    g.e(f"v_max3_f32 v{m}, v{m}, v{S+6}, v{S+7}")
    g.e(f"v_max3_f32 v{t}, v{t}, v{S+8}, v{S+9}")
    g.e(f"v_max3_f32 v{m}, v{m}, v{S+10}, v{S+11}")
    g.e(f"v_max3_f32 v{t}, v{t}, v{S+12}, v{S+13}")
    g.e(f"v_max3_f32 v{m}, v{m}, v{S+14}, v{S+15}")
    g.e(f"v_max_f32 v{m}, v{m}, v{t}")
    def xreduce(op, m, t):
        g.e(f"v_mov_b32 v{t}, v{m}"); g.e("s_nop 1")
        g.e(f"v_permlane16_swap_b32 v{t}, v{m}")
        g.e(f"{op} v{m}, v{m}, v{t}")
        g.e(f"v_mov_b32 v{t}, v{m}"); g.e("s_nop 1")
        g.e(f"v_permlane32_swap_b32 v{t}, v{m}")
        g.e(f"{op} v{m}, v{m}, v{t}")
    xreduce("v_max_f32", m, t)
    g.e(f"v_and_b32 v{X+2}, 3, v0")
    g.e(f"v_lshlrev_b32 v{X+1}, 5, v{X+2}")
    g.e(f"s_lshl_b32 s{S_T0}, s{S_WAVE}, 2")
    g.e(f"v_add_u32 v{X+1}, s{S_T0}, v{X+1}")
    g.e(f"v_lshlrev_b32 v{X+2}, 2, v{X+2}")
    g.e("s_mov_b64 exec, 15")
    g.e(f"ds_write_b32 v{X+1}, v{m} offset:{LDS_M}")
    g.e(f"ds_write_b32 v{X+2}, v{V_BIAS} offset:{LDS_B}")
    g.e("s_mov_b64 exec, -1")
    g.e(f"v_mov_b32 v{V_BIAS}, v{X+1}")
    g.wait("vz")
    for k in range(8): g.e(f"v_xor_b32 v{VZ+k}, s{S_NEG}, v{VZ+k}")
    g.e(f"v_mul_f32 v{m}, s{S_C}, v{m}")
    g.c("---- softmax numerators ----")
    PA=QP
    for i0 in range(0,16,4):
        for i in range(i0,i0+4): g.e(f"v_fma_f32 v{S+i}, v{S+i}, s{S_C}, -v{m}")
        for i in range(i0,i0+4): g.e(f"v_exp_f32 v{S+i}, v{S+i}")
        for i in range(i0,i0+4):
            src=VS+(i>>1)
            if i&1: g.e(f"v_and_b32 v{X+i-i0}, s{S_HI}, v{src}")
            else:   g.e(f"v_lshlrev_b32 v{X+i-i0}, 16, v{src}")
        for i in range(i0,i0+4):
            if i==0: g.e(f"v_mov_b32 v{V_L}, v{S}")
            else:    g.e(f"v_add_f32 v{V_L}, v{V_L}, v{S+i}")
        for i in range(i0,i0+4): g.e(f"v_mul_f32 v{S+i}, v{S+i}, v{X+i-i0}")
        for i in range(i0,i0+4): g.e(f"v_and_b32 v{X+4+i-i0}, v{V_M1}, v{S+i}")
        for i in range(i0,i0+4): g.e(f"v_sub_f32 v{S+i}, v{S+i}, v{X+4+i-i0}")
        for i in range(i0,i0+4,2): g.e(f"v_perm_b32 v{PA+(i>>1)}, v{S+i+1}, v{S+i}, s{S_PERM}")
    xreduce("v_add_f32", V_L, t)
    g.e(f"v_mfma_f32_16x16x32_bf16 v[{CACC}:{CACC+3}], v[{PA}:{PA+3}], v[{VZ}:{VZ+3}], 0")
    g.e(f"v_mfma_f32_16x16x32_bf16 v[{CACC}:{CACC+3}], v[{PA+4}:{PA+7}], v[{VZ+4}:{VZ+7}], v[{CACC}:{CACC+3}]")
    g.e("s_mov_b64 exec, 15")
    g.e(f"ds_write_b32 v{V_BIAS}, v{V_L} offset:{LDS_Lr}")
    g.e("s_mov_b64 exec, -1")
    g.e(f"v_lshrrev_b32 v{V_T0}, 4, v0")
    g.e(f"v_and_b32 v{V_T1}, 15, v0")
    g.e(f"v_lshlrev_b32 v{V_T0}, 9, v{V_T0}")
    g.e(f"v_lshl_add_u32 v{V_T0}, v{V_T1}, 4, v{V_T0}")
    g.e(f"s_lshl_b32 s{S_T0}, s{S_WAVE}, 11")
    g.e(f"v_add_u32 v{V_T0}, s{S_T0}, v{V_T0}")
    g.c("---- PV ----")
    done_wp = {0:set(),1:set()}
    for ui,(wp,half) in enumerate(units):
        g.wait(("V",wp,half,7))
        if ui==3: stamp(g,o,4)
        firstacc = len(done_wp[half])==0
        for e in range(4):
            for s_ in range(8):
                g.e(f"v_cvt_f32_i32 v{X+s_}, v{slot_of[('V',wp,half,s_)]+e}")
            for k in range(4): g.e(f"v_cvt_pk_bf16_f32 v{R+k}, v{X+2*k}, v{X+2*k+1}")
            g.e("s_nop 1")
            a=ACC+16*half+4*e
            c = f"v[{CACC}:{CACC+3}]" if firstacc else f"v[{a}:{a+3}]"
            g.e(f"v_mfma_f32_16x16x32_bf16 v[{a}:{a+3}], v[{PA+4*wp}:{PA+4*wp+3}], v[{R}:{R+3}], {c}")
        done_wp[half].add(wp)
        if len(done_wp[half])==2:
            g.c(f"compaction half {half}")
            g.e("s_nop 7")
            for e in range(4):
                a=ACC+16*half+4*e
                g.e(f"v_permlane16_swap_b32 v{a}, v{a+1}")
                g.e(f"v_permlane16_swap_b32 v{a+2}, v{a+3}")
            for e in range(4):
                a=ACC+16*half+4*e
                g.e(f"v_add_f32 v{X+e}, v{a}, v{a+1}")
                g.e(f"v_add_f32 v{X+4+e}, v{a+2}, v{a+3}")
            g.e("s_nop 0")
            for e in range(4):
                g.e(f"v_permlane32_swap_b32 v{X+e}, v{X+4+e}")
            g.e(f"ds_write_b128 v{V_T0}, v[{X}:{X+3}] offset:{LDS_O+256*half}")
            if ui!=3: g.e("s_nop 1")
    if fused:
        if o.rdy4: g.e("s_waitcnt vmcnt(0)")
        else: g.wait("rdy")
        if o.fast==1:
            g.e(f"v_readfirstlane_b32 s{S_T0}, v{o.V_RDY}")
            g.e(f"v_readfirstlane_b32 s{S_T1}, v{o.V_RDY+1}")
            g.e(f"s_cmp_ge_u32 s{S_XCC}, 4")
            g.e(f"s_cselect_b32 s{S_T0}, s{S_T1}, s{S_T0}")
            g.e(f"s_and_b32 s{S_T1}, s{S_XCC}, 3")
            g.e(f"s_lshl_b32 s{S_T1}, s{S_T1}, 3")
            g.e(f"s_lshr_b32 s{S_T0}, s{S_T0}, s{S_T1}")
            g.e(f"s_and_b32 s{S_T0}, s{S_T0}, 0xff")
            g.e(f"s_cmp_eq_u32 s{S_T0}, 32")
            g.e(f"s_cselect_b32 s{S_FAST}, 1, 0")
    g.e("s_waitcnt lgkmcnt(0)")
    g.e("s_barrier")
    stamp(g,o,5)
    g.c("---- tail roles ----")
    g.e(f"s_cmp_ge_u32 s{S_WAVE}, {4 if fused else 3}")
    g.e("s_cbranch_scc1 L_idle")
    g.e(f"s_cmp_eq_u32 s{S_WAVE}, 2")
    g.e("s_cbranch_scc1 L_stats")
    if fused:
        g.e(f"s_cmp_eq_u32 s{S_WAVE}, 3")
        g.e("s_cbranch_scc1 L_cons")
    g.e(f"s_lshl_b32 s{S_T0}, s{S_WAVE}, 6")
    g.e(f"v_add_u32 v1, s{S_T0}, v0")
    g.e(f"v_lshrrev_b32 v5, 5, v1")
    g.e(f"v_lshlrev_b32 v5, 5, v5")
    g.e(f"v_lshlrev_b32 v2, 4, v1")
    g.e(f"ds_read_b128 v[8:11], v5 offset:{LDS_M}")
    g.e(f"ds_read_b128 v[12:15], v5 offset:{LDS_M+16}")
    for w in range(8):
        g.e(f"ds_read_b128 v[{16+4*w}:{19+4*w}], v2 offset:{LDS_O+2048*w}")
    g.e(f"v_lshrrev_b32 v3, 2, v1")
    g.e(f"v_and_b32 v4, 3, v1")
    g.e(f"v_lshlrev_b32 v3, 12, v3")
    g.e(f"v_lshl_add_u32 v3, v4, 4, v3")
    g.e("s_waitcnt lgkmcnt(8)")
    g.e("v_max3_f32 v6, v8, v9, v10"); g.e("v_max3_f32 v7, v11, v12, v13"); g.e("v_max3_f32 v6, v6, v14, v15"); g.e("v_max_f32 v6, v6, v7")
    g.e(f"v_mul_f32 v6, s{S_C}, v6")
    for w in range(8): g.e(f"v_fma_f32 v{8+w}, v{8+w}, s{S_C}, -v6")
    for w in range(8): g.e(f"v_exp_f32 v{8+w}, v{8+w}")
    g.e("s_waitcnt lgkmcnt(7)")
    for e in range(4): g.e(f"v_mul_f32 v{16+e}, v{16+e}, v8")
    for w in range(1,8):
        g.e(f"s_waitcnt lgkmcnt({7-w})")
        for e in range(4): g.e(f"v_fmac_f32 v{16+e}, v{16+4*w+e}, v{8+w}")
    for e in range(4): g.e(f"v_min_u32 v{16+e}, -2, v{16+e}")
    publish(g,o,16,3,0,"L_po")
    stamp(g,o,6)
    if o.stamps: g.e("s_waitcnt vmcnt(0)")
    stamp(g,o,7); stamp_store(g,o)
    g.e("s_endpgm")
    g.e("L_stats:")
    g.e(f"v_lshrrev_b32 v1, 3, v0")
    g.e(f"v_and_b32 v1, 3, v1")
    g.e(f"v_lshlrev_b32 v2, 5, v1")
    g.e(f"v_lshlrev_b32 v3, 2, v1")
    g.e(f"ds_read_b128 v[16:19], v2 offset:{LDS_Lr}")
    g.e(f"ds_read_b128 v[20:23], v2 offset:{LDS_Lr+16}")
    g.e(f"ds_read_b128 v[24:27], v2 offset:{LDS_M}")
    g.e(f"ds_read_b128 v[28:31], v2 offset:{LDS_M+16}")
    g.e(f"ds_read_b32 v32, v3 offset:{LDS_B}")
    g.e(f"v_lshlrev_b32 v4, 12, v0")
    g.e("s_waitcnt lgkmcnt(1)")
    g.e("v_max3_f32 v6, v24, v25, v26"); g.e("v_max3_f32 v7, v27, v28, v29"); g.e("v_max3_f32 v6, v6, v30, v31"); g.e("v_max_f32 v6, v6, v7")
    g.e(f"v_mul_f32 v7, s{S_C}, v6")
    for w in range(8): g.e(f"v_fma_f32 v{24+w}, v{24+w}, s{S_C}, -v7")
    for w in range(8): g.e(f"v_exp_f32 v{24+w}, v{24+w}")
    g.e("s_waitcnt lgkmcnt(0)")
    g.e("v_sub_f32 v6, v6, v32")
    g.e("v_mul_f32 v16, v16, v24")
    for w in range(1,8): g.e(f"v_fmac_f32 v16, v{16+w}, v{24+w}")
    g.e(f"v_mul_f32 v17, s{S_C}, v6")
    g.e("v_mov_b32 v18, 0"); g.e("v_mov_b32 v19, 0")
    g.e("v_min_u32 v16, -2, v16"); g.e("v_min_u32 v17, -2, v17")
    g.e("s_mov_b32 exec_hi, 0")
    publish(g,o,16,4,64,"L_ps")
    stamp(g,o,6); stamp(g,o,7); stamp_store(g,o)
    g.e("s_endpgm")
    if fused:
        g.e("L_cons:")
        consumer_setup(g,o)
        consumer(g, True, "L_c", o)
        if o.stamps: g.e("s_waitcnt vmcnt(0)")
        stamp(g,o,7); stamp_store(g,o)
        g.e("s_endpgm")
    g.e("L_idle:")
    stamp(g,o,6); stamp(g,o,7); stamp_store(g,o)
    g.e("L_end:")
    g.e("s_endpgm")

def combine_kernel(g, o):
    kernel_begin(g, o.comb_name)
    g.e("s_cmp_ge_u32 s2, 256")
    g.e("s_cbranch_scc1 L2_end")
    g.e(f"s_load_dwordx2 s[{S_OUT}:{S_OUT+1}], s[0:1], 56")
    g.e(f"s_load_dwordx2 s[{S_WS}:{S_WS+1}], s[0:1], 72")
    g.e("s_waitcnt lgkmcnt(0)")
    consumer_setup(g,o)
    st=o.stamps; o.stamps=0
    consumer(g, False, "L2_c", o)
    o.stamps=st
    g.e("L2_end:")
    g.e("s_endpgm")

def build(o):
    g = G()
    g.L.append(HEADER.rstrip("\n"))
    if o.fused:
        o.main_name = KN
        g.e(f"; @launch grid=(256,1,1) block=(512,1,1) lds={LDS_SIZE}")
    else:
        o.main_name = "kvdec_main_kernel"
        o.comb_name = "kvdec_combine_kernel"
        g.e(f"; @launch kernel={o.main_name} grid=(256,1,1) block=(512,1,1) lds={LDS_SIZE}")
        g.e(f"; @launch kernel={o.comb_name} grid=(256,1,1) block=(64,1,1) lds=0")
    g.e('.amdgcn_target "amdgcn-amd-amdhsa--gfx950"')
    g.e(".text")
    main_kernel(g, o)
    if not o.fused: combine_kernel(g, o)
    g.e('.section .rodata,"a"')
    kernel_desc(g, o.main_name, RING + 4*o.nslots)
    if not o.fused: kernel_desc(g, o.comb_name, 40)
    return "\n".join(g.L) + "\n"

def parse(argv):
    ap = argparse.ArgumentParser()
    ap.add_argument("out")
    ap.add_argument("--fused", type=int, default=1)
    ap.add_argument("--nslots", type=int, default=38)
    ap.add_argument("--ld", default="nt")
    ap.add_argument("--stamps", type=int, default=0)
    ap.add_argument("--xmap", type=int, default=0)
    ap.add_argument("--bar0", type=int, default=1)
    ap.add_argument("--korder", default="ju")
    ap.add_argument("--vunits", default="w")
    ap.add_argument("--kfirst", type=int, default=0)
    ap.add_argument("--clearpos", default="first")
    ap.add_argument("--tlbw", type=int, default=0)
    ap.add_argument("--fast", type=int, default=0)
    ap.add_argument("--outfl", default="")
    ap.add_argument("--vsearly", type=int, default=0)
    ap.add_argument("--rdy4", type=int, default=0)
    o = ap.parse_args(argv)
    o.ldflags = o.ld
    o.V_RDY = None
    return o

if __name__ == "__main__":
    o = parse(sys.argv[1:])
    open(o.out, "w").write(build(o))
```

```python
import sys, argparse, struct

KN = "standalone__kv_cache_quant_int4_int2_kv_with_per_channel_or_per_token_scales__decode_kernel"
HEADER = """; Kernarg layout (80 bytes, ptrs only, base s[0:1]):
"""

class G:
    def __init__(self):
        self.L = []
        self.vm = []
    def e(self, s): self.L.append(s)
    def c(self, s): self.L.append("; " + s)
    def vmem(self, s, tag):
        self.L.append(s); self.vm.append(tag)
    def wait(self, tag):
        if tag not in self.vm: return False
        idx = len(self.vm) - 1 - self.vm[::-1].index(tag)
        n = len(self.vm) - 1 - idx
        assert n <= 63
        self.e(f"s_waitcnt vmcnt({n})")
        self.vm = self.vm[idx + 1:]
        return True

V_LANE=0; V_K=1; V_V=2; V_T0=3; V_T1=4; V_M1=5; V_BIAS=6; V_L=7
QP=8
S=24
ACC=40
VS=72; VZ=80
X=88
R=96
CACC=100
RING=104
S_WAVE=3
S_Q=4; S_QK=6; S_QV=8; S_KS=10; S_KZ=12; S_VS=14; S_VZ=16; S_OUT=18; S_DBG=20; S_WS=22
SRD_K=24; SRD_V=28; SRD_A=32; SRD_B=36; SRD_C=40; SRD_VS=44; SRD_VZ=48; SRD_W=52; SRD_O=56; SRD_D=60; SRD_T=96
S_HI=64; S_C=65; S_PERM=66; S_8192=67; S_16384=68; S_24576=69; S_T0=70; S_T1=71; S_T2=72; S_HK=73; S_SPLIT=74; S_NEG=75
S_XCC=76; S_FAST=77
S_ST=80
CEXP = 0.08838834764831845 * 1.4426950408889634
def f2u(x): return struct.unpack("<I", struct.pack("<f", x))[0]

STATS_OFF=0x100000
LDS_M=0
LDS_Lr=128
LDS_B=256
LDS_O=512
LDS_Q=512+8*2048
LDS_VS=LDS_Q+4096
LDS_VZ=LDS_VS+1024
LDS_SIZE0=512+8*2048
LDS_SIZE1=LDS_VZ+1024

def srd(g, dst, base, off_sreg, size):
    if off_sreg is None:
        g.e(f"s_mov_b32 s{dst}, s{base}"); g.e(f"s_mov_b32 s{dst+1}, s{base+1}")
    else:
        g.e(f"s_add_u32 s{dst}, s{base}, s{off_sreg}"); g.e(f"s_addc_u32 s{dst+1}, s{base+1}, 0")
    g.e(f"s_mov_b32 s{dst+2}, {size}")
    g.e(f"s_mov_b32 s{dst+3}, 0x20000")

def kernel_begin(g, name):
    g.e(f".globl {name}"); g.e(".p2align 8"); g.e(f".type {name},@function"); g.e(f"{name}:")

def kernel_desc(g, name, nv, ns=100):
    nv8 = (nv + 7) // 8 * 8
    g.e(".p2align 6")
    g.e(f".amdhsa_kernel {name}")
    g.e(f"  .amdhsa_next_free_vgpr {nv8}")
    g.e(f"  .amdhsa_next_free_sgpr {ns}")
    g.e(f"  .amdhsa_accum_offset {min(256,(nv+3)//4*4)}")
    g.e("  .amdhsa_group_segment_fixed_size 0")
    g.e("  .amdhsa_kernarg_size 80")
    g.e("  .amdhsa_user_sgpr_count 2")
    g.e("  .amdhsa_user_sgpr_kernarg_segment_ptr 1")
    g.e("  .amdhsa_system_sgpr_workgroup_id_x 1")
    g.e(".end_amdhsa_kernel")

def stamp(g, o, k):
    if o.stamps: g.e(f"s_memrealtime s[{S_ST+2*k}:{S_ST+2*k+1}]")
def stamp_store(g, o):
    if not o.stamps: return
    g.e("s_waitcnt lgkmcnt(0)")
    g.e(f"s_lshl_b32 s{S_T0}, s2, 3")
    g.e(f"s_add_u32 s{S_T0}, s{S_T0}, s{S_WAVE}")
    g.e(f"s_lshl_b32 s{S_T0}, s{S_T0}, 5")
    g.e(f"s_add_u32 s{S_T0}, s{S_T0}, 0x400000")
    srd(g, SRD_A, S_WS, S_T0, 32)
    g.e("s_mov_b64 exec, 1")
    for k in range(8): g.e(f"v_mov_b32 v{40+k}, s{S_ST+2*k}")
    g.e("v_mov_b32 v48, 0")
    g.e(f"buffer_store_dwordx4 v[40:43], v48, s[{SRD_A}:{SRD_A+3}], 0 offen")
    g.e(f"buffer_store_dwordx4 v[44:47], v48, s[{SRD_A}:{SRD_A+3}], 0 offen offset:16")
    g.e("s_waitcnt vmcnt(0)")

def consumer_setup(g, o):
    if o.compact:
        g.e(f"s_lshl_b32 s{S_T0}, s2, 11")
        srd(g, SRD_W, S_WS, S_T0, 2048)
        g.e(f"s_lshr_b32 s{S_T0}, s2, 3")
        g.e(f"s_lshl_b32 s{S_T0}, s{S_T0}, 8")
        g.e(f"s_add_u32 s{S_T0}, s{S_T0}, {STATS_OFF}")
        srd(g, SRD_T, S_WS, S_T0, 256)
    else:
        g.e(f"s_lshl_b32 s{S_T0}, s2, 12")
        srd(g, SRD_W, S_WS, S_T0, 4096)
    g.e(f"s_lshl_b32 s{S_T0}, s2, 5")
    srd(g, SRD_O, S_OUT, S_T0, 32)
    g.e(f"v_lshrrev_b32 v8, 2, v{V_LANE}")
    g.e(f"v_and_b32 v9, 3, v{V_LANE}")
    if o.compact:
        g.e(f"v_lshlrev_b32 v10, 3, v8")
        g.e(f"v_lshlrev_b32 v11, 4, v{V_LANE}")
    else:
        g.e(f"v_lshlrev_b32 v10, 7, v8")
        g.e(f"v_lshl_add_u32 v11, v9, 4, v10")
    g.e(f"v_lshrrev_b32 v12, 4, v{V_LANE}")
    g.e(f"v_and_b32 v13, 1, v12")
    g.e(f"v_lshrrev_b32 v12, 1, v12")
    g.e(f"v_lshl_or_b32 v12, v13, 1, v12")
    g.e(f"v_lshl_add_u32 v12, v9, 2, v12")
    g.e(f"v_lshlrev_b32 v12, 1, v12")

def ready_total(g, src, dst):
    g.e(f"v_sad_u8 v{dst}, v{src}, 0, 0")
    g.e(f"v_sad_u8 v{dst}, v{src+1}, 0, v{dst}")
    g.e(f"v_sad_u8 v{dst}, v{src+2}, 0, v{dst}")

def consumer(g, fused, pfx, o, barrier=None):
    A=16; B=20; T0=24; T1=26; t=30
    g.c("---- combine 32 records, store 16 outputs ----")
    if fused:
        RD=o.V_RDY
        g.e(f"s_mov_b32 s{S_T2}, 0x40000")
        g.e(f"s_waitcnt vmcnt(0)")
        g.e(f"{pfx}_rdy:")
        ready_total(g, RD, 13)
        g.e(f"v_cmp_gt_u32 vcc, 32, v13")
        g.e(f"s_cbranch_vccz {pfx}_rdyok" if barrier else f"s_cbranch_vccz {pfx}_poll")
        g.e(f"s_sub_u32 s{S_T2}, s{S_T2}, 1")
        g.e(f"s_cbranch_scc1 {pfx}_rdyok" if barrier else f"s_cbranch_scc1 {pfx}_go")
        g.e(f"buffer_load_dwordx3 v[{RD}:{RD+2}], off, s[{SRD_D}:{SRD_D+3}], 0 sc1")
        g.e(f"s_waitcnt vmcnt(0)")
        g.e(f"s_branch {pfx}_rdy")
        if barrier:
            g.e(f"{pfx}_rdyok:")
            barrier()
    g.e(f"{pfx}_poll:")
    fl = "sc1" if fused else ""
    if o.compact:
        g.e(f"buffer_load_dwordx2 v[{T0}:{T0+1}], v10, s[{SRD_T}:{SRD_T+3}], 0 offen {fl}")
        g.e(f"buffer_load_dwordx2 v[{T1}:{T1+1}], v10, s[{SRD_T}:{SRD_T+3}], 0 offen offset:128 {fl}")
        g.e(f"buffer_load_dwordx4 v[{A}:{A+3}], v11, s[{SRD_W}:{SRD_W+3}], 0 offen {fl}")
        g.e(f"buffer_load_dwordx4 v[{B}:{B+3}], v11, s[{SRD_W}:{SRD_W+3}], 0 offen offset:1024 {fl}")
    else:
        g.e(f"buffer_load_dwordx4 v[{A}:{A+3}], v11, s[{SRD_W}:{SRD_W+3}], 0 offen {fl}")
        g.e(f"buffer_load_dwordx4 v[{B}:{B+3}], v11, s[{SRD_W}:{SRD_W+3}], 0 offen offset:2048 {fl}")
        g.e(f"buffer_load_dwordx2 v[{T0}:{T0+1}], v10, s[{SRD_W}:{SRD_W+3}], 0 offen offset:64 {fl}")
        g.e(f"buffer_load_dwordx2 v[{T1}:{T1+1}], v10, s[{SRD_W}:{SRD_W+3}], 0 offen offset:2112 {fl}")
    g.e("s_waitcnt vmcnt(0)")
    if fused:
        g.e(f"v_max3_u32 v{t}, v{A}, v{A+1}, v{A+2}")
        g.e(f"v_max3_u32 v{t+1}, v{A+3}, v{B}, v{B+1}")
        g.e(f"v_max3_u32 v{t}, v{t}, v{B+2}, v{B+3}")
        g.e(f"v_max3_u32 v{t+1}, v{t+1}, v{T0}, v{T0+1}")
        g.e(f"v_max3_u32 v{t}, v{t}, v{T1}, v{T1+1}")
        g.e(f"v_max_u32 v{t}, v{t}, v{t+1}")
        g.e(f"v_cmp_eq_u32 vcc, -1, v{t}")
        g.e(f"s_cbranch_vccz {pfx}_go")
        g.e(f"s_sub_u32 s{S_T2}, s{S_T2}, 1")
        g.e(f"s_cbranch_scc0 {pfx}_poll")
        g.e(f"{pfx}_go:")
        stamp(g,o,6)
    g.e(f"v_max_f32 v{t}, v{T0+1}, v{T1+1}")
    g.e("s_nop 1")
    g.e(f"v_max_f32_dpp v{t}, v{t}, v{t} row_ror:4 row_mask:0xf bank_mask:0xf")
    g.e("s_nop 1")
    g.e(f"v_max_f32_dpp v{t}, v{t}, v{t} row_ror:8 row_mask:0xf bank_mask:0xf")
    g.e(f"s_nop 0")
    g.e(f"v_mov_b32 v{t+1}, v{t}")
    g.e("s_nop 1")
    g.e(f"v_permlane16_swap_b32 v{t+1}, v{t}")
    g.e(f"v_max_f32 v{t}, v{t}, v{t+1}")
    g.e(f"v_mov_b32 v{t+1}, v{t}")
    g.e("s_nop 1")
    g.e(f"v_permlane32_swap_b32 v{t+1}, v{t}")
    g.e(f"v_max_f32 v{t}, v{t}, v{t+1}")
    g.e(f"v_sub_f32 v{T0+1}, v{T0+1}, v{t}")
    g.e(f"v_sub_f32 v{T1+1}, v{T1+1}, v{t}")
    g.e(f"v_exp_f32 v{T0+1}, v{T0+1}")
    g.e(f"v_exp_f32 v{T1+1}, v{T1+1}")
    g.e("s_nop 0")
    g.e(f"v_mul_f32 v{T0}, v{T0}, v{T0+1}")
    for e in range(4): g.e(f"v_mul_f32 v{A+e}, v{A+e}, v{T0+1}")
    g.e(f"v_fmac_f32 v{T0}, v{T1}, v{T1+1}")
    for e in range(4): g.e(f"v_fmac_f32 v{A+e}, v{B+e}, v{T1+1}")
    g.e(f"v_add_f32_dpp v{T0}, v{T0}, v{T0} row_ror:4 row_mask:0xf bank_mask:0xf")
    g.e("s_nop 0")
    g.e(f"v_permlane32_swap_b32 v{A}, v{A+1}")
    g.e(f"v_permlane32_swap_b32 v{A+2}, v{A+3}")
    g.e(f"v_add_f32_dpp v{T0}, v{T0}, v{T0} row_ror:8 row_mask:0xf bank_mask:0xf")
    g.e(f"v_add_f32 v{A}, v{A}, v{A+1}")
    g.e(f"v_add_f32 v{A+2}, v{A+2}, v{A+3}")
    g.e(f"v_mov_b32 v{t}, v{T0}")
    g.e("s_nop 1")
    g.e(f"v_permlane16_swap_b32 v{A}, v{A+2}")
    g.e(f"v_permlane16_swap_b32 v{t}, v{T0}")
    g.e(f"v_add_f32 v{A}, v{A}, v{A+2}")
    g.e(f"v_add_f32 v{T0}, v{T0}, v{t}")
    g.e("s_nop 0")
    g.e(f"v_mov_b32 v{t}, v{T0}")
    g.e(f"v_add_f32_dpp v{A}, v{A}, v{A} row_ror:4 row_mask:0xf bank_mask:0xf")
    g.e("s_nop 0")
    g.e(f"v_permlane32_swap_b32 v{t}, v{T0}")
    g.e(f"v_add_f32_dpp v{A}, v{A}, v{A} row_ror:8 row_mask:0xf bank_mask:0xf")
    g.e(f"v_add_f32 v{T0}, v{T0}, v{t}")
    g.e(f"v_rcp_f32 v{T0}, v{T0}")
    g.e("s_nop 0")
    g.e(f"v_mul_f32 v{A}, v{A}, v{T0}")
    g.e(f"v_cvt_pk_bf16_f32 v{A}, v{A}, v{A}")
    g.e(f"s_mov_b32 exec_lo, 0x000f000f")
    g.e(f"s_mov_b32 exec_hi, 0x000f000f")
    g.e(f"buffer_store_short v{A}, v12, s[{SRD_O}:{SRD_O+3}], 0 offen {o.outfl}")

def publish(g, o, data, n, addr, srd_, off, lbl):
    ins = f"buffer_store_dwordx{n} v[{data}:{data+n-1}], v{addr}, s[{srd_}:{srd_+3}], 0 offen offset:{off}"
    if o.fused and o.fast==1:
        g.e(f"s_cmp_eq_u32 s{S_FAST}, 1")
        g.e(f"s_cbranch_scc1 {lbl}_f")
        g.e(ins+" sc1")
        g.e(f"s_branch {lbl}_d")
        g.e(f"{lbl}_f:")
        g.e(ins)
        g.e(f"{lbl}_d:")
    elif o.fast==2:
        g.e(ins)
    else:
        g.e(ins+" sc1")

def main_kernel(g, o):
    fused = o.fused
    NS = o.nslots
    ldf = o.ldflags
    kernel_begin(g, o.main_name)
    g.e("s_cmp_ge_u32 s2, 256")
    g.e("s_cbranch_scc1 L_end")
    stamp(g,o,0)
    g.e(f"s_load_dwordx16 s[4:19], s[0:1], 0")
    g.e(f"s_load_dwordx4 s[20:23], s[0:1], 64")
    if o.xmap:
        g.e("s_and_b32 s3, s2, 7"); g.e("s_lshl_b32 s3, s3, 5"); g.e("s_lshr_b32 s2, s2, 3"); g.e("s_add_u32 s2, s2, s3")
    g.e(f"v_lshrrev_b32 v1, 6, v0")
    g.e(f"v_and_b32 v0, 63, v0")
    g.e(f"v_readfirstlane_b32 s{S_WAVE}, v1")
    g.e("v_bfe_u32 v3, v0, 2, 1")
    g.e("v_and_b32 v4, 3, v0")
    g.e(f"v_lshlrev_b32 v{V_K}, 12, v3")
    g.e(f"v_lshl_add_u32 v{V_K}, v4, 9, v{V_K}")
    g.e("v_lshrrev_b32 v3, 3, v0")
    g.e(f"v_lshl_add_u32 v{V_K}, v3, 4, v{V_K}")
    g.e(f"s_lshl_b32 s{S_T0}, s2, 9")
    g.e(f"s_lshl_b32 s{S_T1}, s{S_WAVE}, 6")
    g.e(f"s_add_u32 s{S_T0}, s{S_T0}, s{S_T1}")
    g.e(f"s_lshl_b32 s{S_T1}, s{S_T0}, 9")
    g.e(f"s_lshl_b32 s{S_T2}, s{S_T0}, 1")
    g.e(f"s_mov_b32 s{S_8192}, 8192")
    g.e(f"s_mov_b32 s{S_16384}, 16384")
    g.e(f"s_mov_b32 s{S_24576}, 24576")
    g.e("v_lshrrev_b32 v3, 4, v0")
    g.e(f"v_and_b32 v{X}, 15, v0")
    g.e(f"v_lshlrev_b32 v{V_V}, 12, v3")
    g.e(f"v_lshl_add_u32 v{V_V}, v{X}, 4, v{V_V}")
    g.e(f"v_lshlrev_b32 v{X+1}, 4, v3")
    g.e(f"v_lshl_add_u32 v{X+2}, v4, 8, v{X+1}")
    g.e(f"v_bfe_i32 v{V_M1}, v0, 2, 1")
    g.e(f"v_and_b32 v{V_M1}, 0xffff0000, v{V_M1}")
    g.e(f"s_lshr_b32 s{S_HK}, s2, 5")
    g.e(f"s_and_b32 s{S_SPLIT}, s2, 31")
    g.e(f"s_mov_b32 s{S_HI}, 0xffff0000")
    g.e(f"s_mov_b32 s{S_C}, 0x{f2u(CEXP):08x}")
    g.e(f"s_mov_b32 s{S_PERM}, 0x07060302")
    g.e(f"s_mov_b32 s{S_NEG}, 0x80008000")
    if fused:
        g.e(f"s_getreg_b32 s{S_XCC}, hwreg(HW_REG_XCC_ID, 0, 4)")
        g.e(f"s_min_u32 s{S_XCC}, s{S_XCC}, 8")
    g.e("s_waitcnt lgkmcnt(0)")
    srd(g, SRD_K, S_QK, S_T1, 32768)

    loads = []
    sok = {0:"0",8192:f"s{S_8192}",16384:f"s{S_16384}",24576:f"s{S_24576}"}
    for up in range(4):
        it = [(j,u) for j in range(4) for u in range(2)] if o.korder=="ju" else [(j,u) for u in range(2) for j in range(4)]
        for (j,u) in it:
            loads.append((("K",up,j,u), f"v{V_K}, s[{SRD_K}:{SRD_K+3}], {sok[16384*(up>>1)+8192*u]} offen offset:{2048*(up&1)+128*j}"))
    units = [(0,0),(0,1),(1,0),(1,1)] if o.vunits=="w" else [(0,0),(1,0),(0,1),(1,1)]
    for (wp,half) in units:
        for s_ in range(8):
            loads.append((("V",wp,half,s_), f"v{V_V}, s[{SRD_V}:{SRD_V+3}], {sok[16384*wp]} offen offset:{512*s_+256*half}"))
    slot_of = {}
    free = [RING+4*i for i in range(NS)]
    state = {"next":0}
    def issue(n=1):
        k=0
        for _ in range(n):
            i = state["next"]
            if i >= len(loads) or not free: break
            tag, rest = loads[i]
            slot = free.pop(0)
            slot_of[tag] = slot
            g.vmem(f"buffer_load_dwordx4 v[{slot}:{slot+3}], {rest} {ldf}", tag)
            state["next"] += 1; k+=1
        return k
    def release(*tags):
        for t_ in tags: free.append(slot_of[t_])

    def abc_srds():
        g.e(f"s_lshl_b32 s{S_T0}, s{S_HK}, 10")
        srd(g, SRD_A, S_Q, S_T0, 1024)
        g.e(f"s_lshr_b32 s{S_T0}, s2, 4")
        g.e(f"s_lshl_b32 s{S_T0}, s{S_T0}, 8")
        srd(g, SRD_B, S_KS, S_T0, 256)
        srd(g, SRD_C, S_KZ, S_T0, 256)
    def other_srds():
        srd(g, SRD_V, S_QV, S_T1, 32768)
        if not o.shared:
            srd(g, SRD_VS, S_VS, S_T2, 128)
            srd(g, SRD_VZ, S_VZ, S_T2, 128)
            abc_srds()
        if o.compact:
            g.e(f"s_lshl_b32 s{S_T0}, s{S_HK}, 16")
            g.e(f"s_lshl_b32 s{S_T1}, s{S_SPLIT}, 6")
            g.e(f"s_add_u32 s{S_T0}, s{S_T0}, s{S_T1}")
            srd(g, SRD_W, S_WS, S_T0, 31*2048+64)
            g.e(f"s_lshl_b32 s{S_T0}, s{S_HK}, 10")
            g.e(f"s_lshl_b32 s{S_T1}, s{S_SPLIT}, 3")
            g.e(f"s_add_u32 s{S_T0}, s{S_T0}, s{S_T1}")
            g.e(f"s_add_u32 s{S_T0}, s{S_T0}, {STATS_OFF}")
            srd(g, SRD_T, S_WS, S_T0, 3*256+8)
        else:
            g.e(f"s_lshl_b32 s{S_T0}, s{S_HK}, 17")
            g.e(f"s_lshl_b32 s{S_T1}, s{S_SPLIT}, 7")
            g.e(f"s_add_u32 s{S_T0}, s{S_T0}, s{S_T1}")
            srd(g, SRD_W, S_WS, S_T0, 31*4096+128)
        if fused:
            g.e(f"s_lshl_b32 s{S_T0}, s{S_HK}, 5")
            srd(g, SRD_D, S_DBG, S_T0, 12)
    def clear():
        g.e(f"s_cmp_eq_u32 s{S_WAVE}, {o.clearwave}")
        g.e("s_cbranch_scc0 L_noclear")
        for k in range(4): g.e(f"v_mov_b32 v{R+k}, -1")
        sh = 11 if o.compact else 12
        g.e(f"v_lshrrev_b32 v{X+4}, 2, v0")
        g.e(f"v_and_b32 v{X+5}, 3, v0")
        g.e(f"v_lshlrev_b32 v{X+4}, {sh}, v{X+4}")
        g.e(f"v_lshl_add_u32 v{X+4}, v{X+5}, 4, v{X+4}")
        g.e(f"s_mov_b32 s{S_T0}, {16<<sh}")
        g.e(f"buffer_store_dwordx4 v[{R}:{R+3}], v{X+4}, s[{SRD_W}:{SRD_W+3}], 0 offen sc1")
        g.e(f"buffer_store_dwordx4 v[{R}:{R+3}], v{X+4}, s[{SRD_W}:{SRD_W+3}], s{S_T0} offen sc1")
        if o.compact:
            g.e(f"v_lshlrev_b32 v{X+5}, 8, v{X+5}")
            g.e(f"buffer_store_dwordx2 v[{R}:{R+1}], v{X+5}, s[{SRD_T}:{SRD_T+3}], 0 offen sc1")
        else:
            g.e(f"v_and_b32 v{X+5}, 31, v0")
            g.e(f"v_lshlrev_b32 v{X+5}, 12, v{X+5}")
            g.e(f"buffer_store_dwordx4 v[{R}:{R+3}], v{X+5}, s[{SRD_W}:{SRD_W+3}], 0 offen offset:64 sc1")
        g.e(f"s_and_b32 s{S_T0}, s{S_XCC}, 3")
        g.e(f"s_lshl_b32 s{S_T0}, s{S_T0}, 3")
        g.e(f"s_lshl_b32 s{S_T0}, 1, s{S_T0}")
        g.e(f"s_lshr_b32 s{S_T1}, s{S_XCC}, 2")
        g.e(f"s_lshl_b32 s{S_T1}, s{S_T1}, 2")
        g.e(f"v_mov_b32 v{X+6}, s{S_T0}")
        g.e("s_waitcnt vmcnt(0)")
        g.e(f"s_mov_b64 exec, 1")
        g.e(f"buffer_atomic_add v{X+6}, off, s[{SRD_D}:{SRD_D+3}], s{S_T1} sc1")
        g.e(f"s_mov_b64 exec, -1")
        g.e("L_noclear:")
    QR=ACC; KSR=ACC+16; KZR=S
    def vs_loads():
        for k in range(2):
            g.vmem(f"buffer_load_dwordx4 v[{VS+4*k}:{VS+4*k+3}], v{X+1}, s[{SRD_VS}:{SRD_VS+3}], 0 offen offset:{64*k}", "vs")
            g.vmem(f"buffer_load_dwordx4 v[{VZ+4*k}:{VZ+4*k+3}], v{X+1}, s[{SRD_VZ}:{SRD_VZ+3}], 0 offen offset:{64*k}", "vz")
    def small_loads():
        for j in range(4):
            g.vmem(f"buffer_load_dwordx4 v[{QR+4*j}:{QR+4*j+3}], v{X+2}, s[{SRD_A}:{SRD_A+3}], 0 offen offset:{64*j}", "q")
            g.vmem(f"buffer_load_dwordx4 v[{KSR+4*j}:{KSR+4*j+3}], v{X+1}, s[{SRD_B}:{SRD_B+3}], 0 offen offset:{64*j}", f"ks{j}")
        for j in range(4):
            g.vmem(f"buffer_load_dwordx4 v[{KZR+4*j}:{KZR+4*j+3}], v{X+1}, s[{SRD_C}:{SRD_C+3}], 0 offen offset:{64*j}", "kz")
        if o.vsearly: vs_loads()
    def qprime(qreg, ksreg, dst):
        for i in range(0,4,2):
            for k in range(2):
                q=qreg+i+k; ks=ksreg+i+k; t=X+4*k
                g.e(f"v_lshlrev_b32 v{t}, 16, v{q}")
                g.e(f"v_and_b32 v{t+1}, s{S_HI}, v{q}")
                g.e(f"v_lshlrev_b32 v{t+2}, 16, v{ks}")
                g.e(f"v_and_b32 v{t+3}, s{S_HI}, v{ks}")
            for k in range(2):
                t=X+4*k
                g.e(f"v_mul_f32 v{t}, v{t}, v{t+2}")
                g.e(f"v_mul_f32 v{t+1}, v{t+1}, v{t+3}")
            for k in range(2):
                t=X+4*k
                g.e(f"v_and_b32 v{t+2}, v{V_M1}, v{t}")
                g.e(f"v_and_b32 v{t+3}, v{V_M1}, v{t+1}")
            for k in range(2):
                t=X+4*k
                g.e(f"v_sub_f32 v{t}, v{t}, v{t+2}")
                g.e(f"v_sub_f32 v{t+1}, v{t+1}, v{t+3}")
            for k in range(2):
                t=X+4*k
                g.e(f"v_perm_b32 v{dst+i+k}, v{t+1}, v{t}, s{S_PERM}")
    if o.shared:
        issue(o.kpre)
        g.e(f"s_cmp_ge_u32 s{S_WAVE}, 4")
        g.e("s_cbranch_scc1 L_nosmall")
        abc_srds()
        g.e(f"s_lshl_b32 s{S_T0}, s{S_WAVE}, 6")
        g.e(f"buffer_load_dwordx4 v[{ACC}:{ACC+3}], v{X+2}, s[{SRD_A}:{SRD_A+3}], s{S_T0} offen")
        g.e(f"buffer_load_dwordx4 v[{ACC+4}:{ACC+7}], v{X+1}, s[{SRD_B}:{SRD_B+3}], s{S_T0} offen")
        g.e(f"buffer_load_dwordx4 v[{ACC+8}:{ACC+11}], v{X+1}, s[{SRD_C}:{SRD_C+3}], s{S_T0} offen")
        g.e(f"s_cmp_eq_u32 s{S_WAVE}, 0")
        g.e("s_cbranch_scc0 L_nosmall")
        g.e(f"s_lshl_b32 s{S_T0}, s2, 10")
        srd(g, SRD_VS, S_VS, S_T0, 1024)
        srd(g, SRD_VZ, S_VZ, S_T0, 1024)
        g.e(f"v_lshlrev_b32 v{X+3}, 4, v0")
        g.e(f"buffer_load_dwordx4 v[{ACC+12}:{ACC+15}], v{X+3}, s[{SRD_VS}:{SRD_VS+3}], 0 offen")
        g.e(f"buffer_load_dwordx4 v[{ACC+16}:{ACC+19}], v{X+3}, s[{SRD_VZ}:{SRD_VZ+3}], 0 offen")
        g.e("L_nosmall:")
        other_srds()
        issue(32-o.kpre)
        stamp(g,o,1)
        g.e(f"s_cmp_ge_u32 s{S_WAVE}, 4")
        g.e("s_cbranch_scc1 L_bar0")
        g.e(f"v_lshlrev_b32 v{V_T0}, 4, v0")
        g.e(f"s_lshl_b32 s{S_T0}, s{S_WAVE}, 10")
        g.e(f"v_add_u32 v{V_T1}, s{S_T0}, v{V_T0}")
        g.e(f"s_waitcnt vmcnt({32-o.kpre})")
        qprime(ACC, ACC+4, QP)
        g.e(f"v_and_b32 v{X}, 3, v0")
        g.e(f"s_lshl_b32 s{S_T0}, s{S_WAVE}, 2")
        g.e(f"v_mfma_f32_16x16x32_bf16 v[{CACC}:{CACC+3}], v[{ACC+8}:{ACC+11}], v[{QP}:{QP+3}], 0")
        g.e(f"ds_write_b128 v{V_T1}, v[{QP}:{QP+3}] offset:{LDS_Q}")
        g.e(f"v_lshl_add_u32 v{X}, v{X}, 4, s{S_T0}")
        g.e(f"s_cmp_eq_u32 s{S_WAVE}, 0")
        g.e("s_cbranch_scc0 L_novs")
        g.e(f"ds_write_b128 v{V_T0}, v[{ACC+12}:{ACC+15}] offset:{LDS_VS}")
        g.e(f"ds_write_b128 v{V_T0}, v[{ACC+16}:{ACC+19}] offset:{LDS_VZ}")
        g.e("L_novs:")
        g.e("s_nop 7")
        g.e(f"v_add_f32_dpp v{V_BIAS}, v{CACC}, v{CACC} row_ror:4 row_mask:0xf bank_mask:0xf")
        g.e("s_mov_b64 exec, 15")
        g.e(f"ds_write_b32 v{X}, v{V_BIAS} offset:{LDS_B}")
        g.e("s_mov_b64 exec, -1")
        if fused: clear()
        g.e("s_waitcnt lgkmcnt(0)")
        g.e("L_bar0:")
    elif o.kfirst:
        if fused and o.clearpos=="first":
            other_srds(); clear(); issue(32)
        else:
            issue(8); other_srds(); issue(24)
            if fused: clear_after=True
        if o.tlbw:
            g.vmem(f"buffer_load_dword v{X+7}, off, s[{SRD_V}:{SRD_V+3}], 0 {ldf}", "tlb")
        small_loads()
        if fused and o.clearpos!="first": clear()
    else:
        issue(o.kpre)
        other_srds()
        if fused and o.clearpos=="first": clear()
        if o.tlbw:
            g.vmem(f"buffer_load_dword v{X+7}, off, s[{SRD_V}:{SRD_V+3}], 0 {ldf}", "tlb")
        small_loads()
        issue(32-o.kpre)
        if fused and o.clearpos!="first": clear()
    if not o.shared: stamp(g,o,1)
    if o.bar0 or o.shared: g.e("s_barrier")
    if o.shared:
        g.e(f"v_lshlrev_b32 v{V_T0}, 4, v0")
        g.e(f"s_lshl_b32 s{S_T0}, s{S_WAVE}, 7")
        g.e(f"v_and_b32 v{V_T1}, 0x30, v0")
        g.e(f"v_add_u32 v{V_T1}, s{S_T0}, v{V_T1}")
        for j in range(4): g.e(f"ds_read_b128 v[{QP+4*j}:{QP+4*j+3}], v{V_T0} offset:{LDS_Q+1024*j}")
        for k in range(2):
            g.e(f"ds_read_b128 v[{VS+4*k}:{VS+4*k+3}], v{V_T1} offset:{LDS_VS+64*k}")
            g.e(f"ds_read_b128 v[{VZ+4*k}:{VZ+4*k+3}], v{V_T1} offset:{LDS_VZ+64*k}")
        issue(NS-32)
        g.e("s_waitcnt lgkmcnt(0)")
    else:
        if not o.vsearly: vs_loads()
        issue(NS-32)
        g.c("---- q' ----")
        for j in range(4):
            g.wait(f"ks{j}")
            qprime(QR+4*j, KSR+4*j, QP+4*j)
        g.c("---- bias = q'.kz ----")
        if not g.wait("kz"): g.e("s_nop 1")
        for j in range(4):
            c = "0" if j==0 else f"v[{CACC}:{CACC+3}]"
            g.e(f"v_mfma_f32_16x16x32_bf16 v[{CACC}:{CACC+3}], v[{KZR+4*j}:{KZR+4*j+3}], v[{QP+4*j}:{QP+4*j+3}], {c}")
    stamp(g,o,2)
    g.c("---- QK ----")
    first=True
    for up in range(4):
        for j in range(4):
            g.wait(("K",up,j,1) if o.korder=="ju" else ("K",up,j,1))
            a=slot_of[("K",up,j,0)]; b=slot_of[("K",up,j,1)]
            for e in range(4): g.e(f"v_cvt_f32_i32 v{X+e}, v{a+e}")
            for e in range(4): g.e(f"v_cvt_f32_i32 v{X+4+e}, v{b+e}")
            for e in range(4): g.e(f"v_cvt_f32_i32_dpp v{X+e}, v{b+e} row_ror:8 row_mask:0xf bank_mask:0xc")
            for e in range(4): g.e(f"v_cvt_f32_i32_dpp v{X+4+e}, v{a+e} row_ror:8 row_mask:0xf bank_mask:0x3")
            if first and not o.shared:
                g.e(f"v_add_f32_dpp v{V_BIAS}, v{CACC}, v{CACC} row_ror:4 row_mask:0xf bank_mask:0xf")
            first=False
            for k in range(4): g.e(f"v_cvt_pk_bf16_f32 v{R+k}, v{X+2*k}, v{X+2*k+1}")
            release(("K",up,j,0),("K",up,j,1))
            k_=issue(2)
            if k_ < 2: g.e("s_nop 1")
            c = "0" if j==0 else f"v[{S+4*up}:{S+4*up+3}]"
            g.e(f"v_mfma_f32_16x16x32_bf16 v[{S+4*up}:{S+4*up+3}], v[{R}:{R+3}], v[{QP+4*j}:{QP+4*j+3}], {c}")
    issue(100)
    assert state["next"]==len(loads)
    if fused:
        o.V_RDY = free.pop(0)
        if o.rdy4:
            g.e(f"s_cmp_lt_u32 s{S_WAVE}, 4")
            g.e("s_cbranch_scc0 L_nordy")
            g.e(f"buffer_load_dwordx3 v[{o.V_RDY}:{o.V_RDY+2}], off, s[{SRD_D}:{SRD_D+3}], 0 sc1")
            g.e("L_nordy:")
        else:
            g.e(f"buffer_load_dwordx3 v[{o.V_RDY}:{o.V_RDY+2}], off, s[{SRD_D}:{SRD_D+3}], 0 sc1")
            g.vm.append("rdy")
    stamp(g,o,3)
    g.c("---- max ----")
    g.e("s_nop 6" if fused else "s_nop 7")
    for i in range(16):
        g.e(f"v_add_f32_dpp v{S+i}, v{S+i}, v{S+i} row_ror:4 row_mask:0xf bank_mask:0xf")
    m=V_T0; t=V_T1
    g.e(f"v_max3_f32 v{m}, v{S}, v{S+1}, v{S+2}")
    g.e(f"v_max3_f32 v{t}, v{S+3}, v{S+4}, v{S+5}")
    g.e(f"v_max3_f32 v{m}, v{m}, v{S+6}, v{S+7}")
    g.e(f"v_max3_f32 v{t}, v{t}, v{S+8}, v{S+9}")
    g.e(f"v_max3_f32 v{m}, v{m}, v{S+10}, v{S+11}")
    g.e(f"v_max3_f32 v{t}, v{t}, v{S+12}, v{S+13}")
    g.e(f"v_max3_f32 v{m}, v{m}, v{S+14}, v{S+15}")
    g.e(f"v_max_f32 v{m}, v{m}, v{t}")
    def xreduce(op, m, t):
        g.e(f"v_mov_b32 v{t}, v{m}"); g.e("s_nop 1")
        g.e(f"v_permlane16_swap_b32 v{t}, v{m}")
        g.e(f"{op} v{m}, v{m}, v{t}")
        g.e(f"v_mov_b32 v{t}, v{m}"); g.e("s_nop 1")
        g.e(f"v_permlane32_swap_b32 v{t}, v{m}")
        g.e(f"{op} v{m}, v{m}, v{t}")
    xreduce("v_max_f32", m, t)
    g.e(f"v_and_b32 v{X+2}, 3, v0")
    g.e(f"v_lshlrev_b32 v{X+1}, 5, v{X+2}")
    g.e(f"s_lshl_b32 s{S_T0}, s{S_WAVE}, 2")
    g.e(f"v_add_u32 v{X+1}, s{S_T0}, v{X+1}")
    g.e(f"v_lshlrev_b32 v{X+2}, 2, v{X+2}")
    g.e("s_mov_b64 exec, 15")
    g.e(f"ds_write_b32 v{X+1}, v{m} offset:{LDS_M}")
    if not o.shared: g.e(f"ds_write_b32 v{X+2}, v{V_BIAS} offset:{LDS_B}")
    g.e("s_mov_b64 exec, -1")
    g.e(f"v_mov_b32 v{V_BIAS}, v{X+1}")
    if not o.shared: g.wait("vz")
    for k in range(8): g.e(f"v_xor_b32 v{VZ+k}, s{S_NEG}, v{VZ+k}")
    g.e(f"v_mul_f32 v{m}, s{S_C}, v{m}")
    g.c("---- softmax numerators ----")
    PA=QP
    for i0 in range(0,16,4):
        for i in range(i0,i0+4): g.e(f"v_fma_f32 v{S+i}, v{S+i}, s{S_C}, -v{m}")
        for i in range(i0,i0+4): g.e(f"v_exp_f32 v{S+i}, v{S+i}")
        for i in range(i0,i0+4):
            src=VS+(i>>1)
            if i&1: g.e(f"v_and_b32 v{X+i-i0}, s{S_HI}, v{src}")
            else:   g.e(f"v_lshlrev_b32 v{X+i-i0}, 16, v{src}")
        for i in range(i0,i0+4):
            if i==0: g.e(f"v_mov_b32 v{V_L}, v{S}")
            else:    g.e(f"v_add_f32 v{V_L}, v{V_L}, v{S+i}")
        for i in range(i0,i0+4): g.e(f"v_mul_f32 v{S+i}, v{S+i}, v{X+i-i0}")
        for i in range(i0,i0+4): g.e(f"v_and_b32 v{X+4+i-i0}, v{V_M1}, v{S+i}")
        for i in range(i0,i0+4): g.e(f"v_sub_f32 v{S+i}, v{S+i}, v{X+4+i-i0}")
        for i in range(i0,i0+4,2): g.e(f"v_perm_b32 v{PA+(i>>1)}, v{S+i+1}, v{S+i}, s{S_PERM}")
    xreduce("v_add_f32", V_L, t)
    g.e(f"v_mfma_f32_16x16x32_bf16 v[{CACC}:{CACC+3}], v[{PA}:{PA+3}], v[{VZ}:{VZ+3}], 0")
    g.e(f"v_mfma_f32_16x16x32_bf16 v[{CACC}:{CACC+3}], v[{PA+4}:{PA+7}], v[{VZ+4}:{VZ+7}], v[{CACC}:{CACC+3}]")
    g.e("s_mov_b64 exec, 15")
    g.e(f"ds_write_b32 v{V_BIAS}, v{V_L} offset:{LDS_Lr}")
    g.e("s_mov_b64 exec, -1")
    g.e(f"v_lshrrev_b32 v{V_T0}, 4, v0")
    g.e(f"v_and_b32 v{V_T1}, 15, v0")
    g.e(f"v_lshlrev_b32 v{V_T0}, 9, v{V_T0}")
    g.e(f"v_lshl_add_u32 v{V_T0}, v{V_T1}, 4, v{V_T0}")
    g.e(f"s_lshl_b32 s{S_T0}, s{S_WAVE}, 11")
    g.e(f"v_add_u32 v{V_T0}, s{S_T0}, v{V_T0}")
    g.c("---- PV ----")
    done_wp = {0:set(),1:set()}
    for ui,(wp,half) in enumerate(units):
        firstacc = len(done_wp[half])==0
        if o.fineV:
            for k in range(4):
                g.wait(("V",wp,half,2*k+1))
                if ui==3 and k==3: stamp(g,o,4)
                for e in range(4): g.e(f"v_cvt_f32_i32 v{X+e}, v{slot_of[('V',wp,half,2*k)]+e}")
                for e in range(4): g.e(f"v_cvt_f32_i32 v{X+4+e}, v{slot_of[('V',wp,half,2*k+1)]+e}")
                for e in range(4): g.e(f"v_cvt_pk_bf16_f32 v{S+4*e+k}, v{X+e}, v{X+4+e}")
            for e in range(4):
                if e==0: g.e("s_nop 0")
                a_=ACC+16*half+4*e
                c = f"v[{CACC}:{CACC+3}]" if firstacc else f"v[{a_}:{a_+3}]"
                g.e(f"v_mfma_f32_16x16x32_bf16 v[{a_}:{a_+3}], v[{PA+4*wp}:{PA+4*wp+3}], v[{S+4*e}:{S+4*e+3}], {c}")
        else:
            g.wait(("V",wp,half,7))
            if ui==3: stamp(g,o,4)
            for e in range(4):
                for s_ in range(8):
                    g.e(f"v_cvt_f32_i32 v{X+s_}, v{slot_of[('V',wp,half,s_)]+e}")
                for k in range(4): g.e(f"v_cvt_pk_bf16_f32 v{R+k}, v{X+2*k}, v{X+2*k+1}")
                g.e("s_nop 1")
                a_=ACC+16*half+4*e
                c = f"v[{CACC}:{CACC+3}]" if firstacc else f"v[{a_}:{a_+3}]"
                g.e(f"v_mfma_f32_16x16x32_bf16 v[{a_}:{a_+3}], v[{PA+4*wp}:{PA+4*wp+3}], v[{R}:{R+3}], {c}")
        done_wp[half].add(wp)
        if len(done_wp[half])==2:
            g.c(f"compaction half {half}")
            g.e("s_nop 7" if not o.fineV else "s_nop 4")
            for e in range(4):
                a_=ACC+16*half+4*e
                g.e(f"v_permlane16_swap_b32 v{a_}, v{a_+1}")
                g.e(f"v_permlane16_swap_b32 v{a_+2}, v{a_+3}")
            for e in range(4):
                a_=ACC+16*half+4*e
                g.e(f"v_add_f32 v{X+e}, v{a_}, v{a_+1}")
                g.e(f"v_add_f32 v{X+4+e}, v{a_+2}, v{a_+3}")
            g.e("s_nop 0")
            for e in range(4):
                g.e(f"v_permlane32_swap_b32 v{X+e}, v{X+4+e}")
            g.e(f"ds_write_b128 v{V_T0}, v[{X}:{X+3}] offset:{LDS_O+256*half}")
            if ui!=3: g.e("s_nop 1")

    def fast_calc():
        if fused and o.fast==1:
            g.e(f"v_readfirstlane_b32 s{S_T0}, v{o.V_RDY}")
            g.e(f"v_readfirstlane_b32 s{S_T1}, v{o.V_RDY+1}")
            g.e(f"s_cmp_ge_u32 s{S_XCC}, 4")
            g.e(f"s_cselect_b32 s{S_T0}, s{S_T1}, s{S_T0}")
            g.e(f"s_and_b32 s{S_T1}, s{S_XCC}, 3")
            g.e(f"s_lshl_b32 s{S_T1}, s{S_T1}, 3")
            g.e(f"s_lshr_b32 s{S_T0}, s{S_T0}, s{S_T1}")
            g.e(f"s_and_b32 s{S_T0}, s{S_T0}, 0xff")
            g.e(f"s_cmp_eq_u32 s{S_T0}, 32")
            g.e(f"s_cselect_b32 s{S_FAST}, 1, 0")
            g.e(f"s_cmp_ge_u32 s{S_XCC}, 8")
            g.e(f"s_cselect_b32 s{S_FAST}, 0, s{S_FAST}")
    def final_barrier():
        g.e("s_waitcnt lgkmcnt(0)")
        g.e("s_barrier")
        stamp(g,o,5)
    g.c("---- tail roles ----")
    nrole = 4 if fused else 3
    if o.presetup:
        g.e(f"s_cmp_ge_u32 s{S_WAVE}, {nrole}")
        g.e("s_cbranch_scc1 L_idle")
        if fused:
            g.e("s_waitcnt vmcnt(0)")
            fast_calc()
    else:
        if fused:
            if o.rdy4: g.e("s_waitcnt vmcnt(0)")
            else: g.wait("rdy")
            fast_calc()
        final_barrier()
        g.e(f"s_cmp_ge_u32 s{S_WAVE}, {nrole}")
        g.e("s_cbranch_scc1 L_idle")
    g.e(f"s_cmp_eq_u32 s{S_WAVE}, 2")
    g.e("s_cbranch_scc1 L_stats")
    if fused:
        g.e(f"s_cmp_eq_u32 s{S_WAVE}, 3")
        g.e("s_cbranch_scc1 L_cons")
    g.e(f"s_lshl_b32 s{S_T0}, s{S_WAVE}, 6")
    g.e(f"v_add_u32 v1, s{S_T0}, v0")
    g.e(f"v_lshrrev_b32 v5, 5, v1")
    g.e(f"v_lshlrev_b32 v5, 5, v5")
    g.e(f"v_lshlrev_b32 v2, 4, v1")
    g.e(f"v_lshrrev_b32 v6, 2, v1")
    g.e(f"v_and_b32 v4, 3, v1")
    g.e(f"v_lshlrev_b32 v6, {11 if o.compact else 12}, v6")
    g.e(f"v_lshl_add_u32 v4, v4, 4, v6")
    if o.presetup: final_barrier()
    g.e(f"ds_read_b128 v[8:11], v5 offset:{LDS_M}")
    g.e(f"ds_read_b128 v[12:15], v5 offset:{LDS_M+16}")
    for w in range(8):
        g.e(f"ds_read_b128 v[{16+4*w}:{19+4*w}], v2 offset:{LDS_O+2048*w}")
    g.e("s_waitcnt lgkmcnt(8)")
    g.e("v_max3_f32 v6, v8, v9, v10"); g.e("v_max3_f32 v7, v11, v12, v13"); g.e("v_max3_f32 v6, v6, v14, v15"); g.e("v_max_f32 v6, v6, v7")
    g.e(f"v_mul_f32 v6, s{S_C}, v6")
    for w in range(8): g.e(f"v_fma_f32 v{8+w}, v{8+w}, s{S_C}, -v6")
    for w in range(8): g.e(f"v_exp_f32 v{8+w}, v{8+w}")
    g.e("s_waitcnt lgkmcnt(7)")
    for e in range(4): g.e(f"v_mul_f32 v{16+e}, v{16+e}, v8")
    for w in range(1,8):
        g.e(f"s_waitcnt lgkmcnt({7-w})")
        for e in range(4): g.e(f"v_fmac_f32 v{16+e}, v{16+4*w+e}, v{8+w}")
    for e in range(4): g.e(f"v_min_u32 v{16+e}, -2, v{16+e}")
    publish(g,o,16,4,4,SRD_W,0,"L_po")
    stamp(g,o,6)
    if o.stamps: g.e("s_waitcnt vmcnt(0)")
    stamp(g,o,7); stamp_store(g,o)
    g.e("s_endpgm")
    g.e("L_stats:")
    if o.compact:
        g.e(f"v_and_b32 v1, 3, v0")
        g.e(f"v_lshlrev_b32 v4, 8, v1")
    else:
        g.e(f"v_lshrrev_b32 v1, 3, v0")
        g.e(f"v_and_b32 v1, 3, v1")
        g.e(f"v_lshlrev_b32 v4, 12, v0")
    g.e(f"v_lshlrev_b32 v2, 5, v1")
    g.e(f"v_lshlrev_b32 v3, {4 if o.shared else 2}, v1")
    if o.presetup: final_barrier()
    g.e(f"ds_read_b128 v[24:27], v2 offset:{LDS_M}")
    g.e(f"ds_read_b128 v[28:31], v2 offset:{LDS_M+16}")
    g.e(f"ds_read_b128 v[16:19], v2 offset:{LDS_Lr}")
    g.e(f"ds_read_b128 v[20:23], v2 offset:{LDS_Lr+16}")
    if o.shared: g.e(f"ds_read_b128 v[32:35], v3 offset:{LDS_B}")
    else: g.e(f"ds_read_b32 v32, v3 offset:{LDS_B}")
    g.e("s_waitcnt lgkmcnt(3)")
    g.e("v_max3_f32 v6, v24, v25, v26"); g.e("v_max3_f32 v7, v27, v28, v29"); g.e("v_max3_f32 v6, v6, v30, v31"); g.e("v_max_f32 v6, v6, v7")
    g.e(f"v_mul_f32 v7, s{S_C}, v6")
    for w in range(8): g.e(f"v_fma_f32 v{24+w}, v{24+w}, s{S_C}, -v7")
    for w in range(8): g.e(f"v_exp_f32 v{24+w}, v{24+w}")
    g.e("s_waitcnt lgkmcnt(0)")
    if o.shared:
        g.e("v_add_f32 v32, v32, v33"); g.e("v_add_f32 v34, v34, v35"); g.e("v_add_f32 v32, v32, v34")
    g.e("v_sub_f32 v6, v6, v32")
    g.e("v_mul_f32 v16, v16, v24")
    g.e("v_mul_f32 v18, v18, v26")
    g.e("v_fmac_f32 v16, v17, v25")
    g.e("v_fmac_f32 v18, v19, v27")
    g.e("v_fmac_f32 v16, v20, v28")
    g.e("v_fmac_f32 v18, v21, v29")
    g.e("v_fmac_f32 v16, v22, v30")
    g.e("v_fmac_f32 v18, v23, v31")
    g.e(f"v_mul_f32 v17, s{S_C}, v6")
    g.e("v_add_f32 v16, v16, v18")
    g.e("v_min_u32 v17, -2, v17")
    g.e("v_min_u32 v16, -2, v16")
    if o.compact:
        g.e("s_mov_b64 exec, 15")
        publish(g,o,16,2,4,SRD_T,0,"L_ps")
    else:
        g.e("v_mov_b32 v18, 0"); g.e("v_mov_b32 v19, 0")
        g.e("s_mov_b32 exec_hi, 0")
        publish(g,o,16,4,4,SRD_W,64,"L_ps")
    stamp(g,o,6); stamp(g,o,7); stamp_store(g,o)
    g.e("s_endpgm")
    if fused:
        g.e("L_cons:")
        consumer_setup(g,o)
        consumer(g, True, "L_c", o, final_barrier if o.presetup else None)
        if o.stamps: g.e("s_waitcnt vmcnt(0)")
        stamp(g,o,7); stamp_store(g,o)
        g.e("s_endpgm")
    g.e("L_idle:")
    if o.presetup: final_barrier()
    stamp(g,o,6); stamp(g,o,7); stamp_store(g,o)
    g.e("L_end:")
    g.e("s_endpgm")

def combine_kernel(g, o):
    kernel_begin(g, o.comb_name)
    g.e("s_cmp_ge_u32 s2, 256")
    g.e("s_cbranch_scc1 L2_end")
    g.e(f"s_load_dwordx2 s[{S_OUT}:{S_OUT+1}], s[0:1], 56")
    g.e(f"s_load_dwordx2 s[{S_WS}:{S_WS+1}], s[0:1], 72")
    g.e("s_waitcnt lgkmcnt(0)")
    consumer_setup(g,o)
    st=o.stamps; o.stamps=0
    consumer(g, False, "L2_c", o)
    o.stamps=st
    g.e("L2_end:")
    g.e("s_endpgm")

def build(o):
    g = G()
    o.lds = LDS_SIZE1 if o.shared else LDS_SIZE0
    g.L.append(HEADER.rstrip("\n"))
    if o.fused:
        o.main_name = KN
        g.e(f"; @launch grid=(256,1,1) block=(512,1,1) lds={o.lds}")
    else:
        o.main_name = "kvdec_main_kernel"
        o.comb_name = "kvdec_combine_kernel"
        g.e(f"; @launch kernel={o.main_name} grid=(256,1,1) block=(512,1,1) lds={o.lds}")
        g.e(f"; @launch kernel={o.comb_name} grid=(256,1,1) block=(64,1,1) lds=0")
    g.e('.amdgcn_target "amdgcn-amd-amdhsa--gfx950"')
    g.e(".text")
    main_kernel(g, o)
    if not o.fused: combine_kernel(g, o)
    g.e('.section .rodata,"a"')
    kernel_desc(g, o.main_name, RING + 4*o.nslots)
    if not o.fused: kernel_desc(g, o.comb_name, 40)
    return "\n".join(g.L) + "\n"

def parse(argv):
    ap = argparse.ArgumentParser()
    ap.add_argument("out")
    ap.add_argument("--fused", type=int, default=1)
    ap.add_argument("--nslots", type=int, default=38)
    ap.add_argument("--ld", default="nt")
    ap.add_argument("--stamps", type=int, default=0)
    ap.add_argument("--xmap", type=int, default=0)
    ap.add_argument("--bar0", type=int, default=1)
    ap.add_argument("--korder", default="ju")
    ap.add_argument("--vunits", default="w")
    ap.add_argument("--kfirst", type=int, default=0)
    ap.add_argument("--clearpos", default="first")
    ap.add_argument("--tlbw", type=int, default=0)
    ap.add_argument("--fast", type=int, default=0)
    ap.add_argument("--outfl", default="")
    ap.add_argument("--vsearly", type=int, default=0)
    ap.add_argument("--rdy4", type=int, default=0)
    ap.add_argument("--compact", type=int, default=0)
    ap.add_argument("--presetup", type=int, default=0)
    ap.add_argument("--clearwave", type=int, default=0)
    ap.add_argument("--kpre", type=int, default=0)
    ap.add_argument("--fineV", type=int, default=0)
    ap.add_argument("--shared", type=int, default=0)
    o = ap.parse_args(argv)
    o.ldflags = o.ld
    o.V_RDY = None
    return o

if __name__ == "__main__":
    o = parse(sys.argv[1:])
    open(o.out, "w").write(build(o))
```

```python
import sys, argparse, struct

KN = "standalone__kv_cache_quant_int4_int2_kv_with_per_channel_or_per_token_scales__decode_kernel"
HEADER = """; Kernarg layout (80 bytes, ptrs only, base s[0:1]):
;   24: k_scales (1,8,2,128) bf16 | 32: k_zeros | 40: v_scales (1,8,16384,1) bf16 | 48: v_zeros
"""

class G:
    def __init__(self):
        self.L = []
        self.vm = []
    def e(self, s): self.L.append(s)
    def c(self, s): self.L.append("; " + s)
    def vmem(self, s, tag):
        self.L.append(s); self.vm.append(tag)
    def wait(self, tag):
        if tag not in self.vm: return False
        idx = len(self.vm) - 1 - self.vm[::-1].index(tag)
        n = len(self.vm) - 1 - idx
        assert n <= 63
        self.e(f"s_waitcnt vmcnt({n})")
        self.vm = self.vm[idx + 1:]
        return True

V_LANE=0; V_K=1; V_V=2; V_T0=3; V_T1=4; V_M1=5; V_BIAS=6; V_L=7
QP=8
S=24
ACC=40
VS=72; VZ=80
X=88
R=96
CACC=100
RING=104
S_WAVE=3
S_Q=4; S_QK=6; S_QV=8; S_KS=10; S_KZ=12; S_VS=14; S_VZ=16; S_OUT=18; S_DBG=20; S_WS=22
SRD_K=24; SRD_V=28; SRD_A=32; SRD_B=36; SRD_C=40; SRD_VS=44; SRD_VZ=48; SRD_W=52; SRD_O=56; SRD_D=60; SRD_T=96
S_HI=64; S_C=65; S_PERM=66; S_8192=67; S_16384=68; S_24576=69; S_T0=70; S_T1=71; S_T2=72; S_HK=73; S_SPLIT=74; S_NEG=75
S_XCC=76; S_FAST=77
S_ST=80
CEXP = 0.08838834764831845 * 1.4426950408889634
def f2u(x): return struct.unpack("<I", struct.pack("<f", x))[0]

STATS_OFF=0x100000
LDS_M=0
LDS_Lr=128
LDS_B=256
LDS_O=512
LDS_Q=512+8*2048
LDS_VS=LDS_Q+4096
LDS_VZ=LDS_VS+1024
LDS_SIZE0=512+8*2048
LDS_SIZE1=LDS_VZ+1024

def srd(g, dst, base, off_sreg, size):
    if off_sreg is None:
        g.e(f"s_mov_b32 s{dst}, s{base}"); g.e(f"s_mov_b32 s{dst+1}, s{base+1}")
    else:
        g.e(f"s_add_u32 s{dst}, s{base}, s{off_sreg}"); g.e(f"s_addc_u32 s{dst+1}, s{base+1}, 0")
    g.e(f"s_mov_b32 s{dst+2}, {size}")
    g.e(f"s_mov_b32 s{dst+3}, 0x20000")

def kernel_begin(g, name):
    g.e(f".globl {name}"); g.e(".p2align 8"); g.e(f".type {name},@function"); g.e(f"{name}:")

def kernel_desc(g, name, nv, ns=100):
    nv8 = (nv + 7) // 8 * 8
    g.e(".p2align 6")
    g.e(f".amdhsa_kernel {name}")
    g.e(f"  .amdhsa_next_free_vgpr {nv8}")
    g.e(f"  .amdhsa_next_free_sgpr {ns}")
    g.e(f"  .amdhsa_accum_offset {min(256,(nv+3)//4*4)}")
    g.e("  .amdhsa_group_segment_fixed_size 0")
    g.e("  .amdhsa_kernarg_size 80")
    g.e("  .amdhsa_user_sgpr_count 2")
    g.e("  .amdhsa_user_sgpr_kernarg_segment_ptr 1")
    g.e("  .amdhsa_system_sgpr_workgroup_id_x 1")
    g.e(".end_amdhsa_kernel")

def stamp(g, o, k):
    if o.stamps==1 or (o.stamps==2 and k in (0,5,6,7)): g.e(f"s_memrealtime s[{S_ST+2*k}:{S_ST+2*k+1}]")
def stamp2(g, o, k):
    if o.stamps==2: g.e(f"s_memrealtime s[{S_ST+2*k}:{S_ST+2*k+1}]")
def stamp_store(g, o):
    if not o.stamps: return
    g.e("s_waitcnt lgkmcnt(0)")
    g.e(f"s_lshl_b32 s{S_T0}, s2, 3")
    g.e(f"s_add_u32 s{S_T0}, s{S_T0}, s{S_WAVE}")
    g.e(f"s_lshl_b32 s{S_T0}, s{S_T0}, 5")
    g.e(f"s_add_u32 s{S_T0}, s{S_T0}, 0x400000")
    srd(g, SRD_A, S_WS, S_T0, 32)
    g.e("s_mov_b64 exec, 1")
    for k in range(8): g.e(f"v_mov_b32 v{40+k}, s{S_ST+2*k}")
    g.e("v_mov_b32 v48, 0")
    g.e(f"buffer_store_dwordx4 v[40:43], v48, s[{SRD_A}:{SRD_A+3}], 0 offen")
    g.e(f"buffer_store_dwordx4 v[44:47], v48, s[{SRD_A}:{SRD_A+3}], 0 offen offset:16")
    g.e("s_waitcnt vmcnt(0)")

def consumer_setup(g, o):
    if o.compact:
        g.e(f"s_lshl_b32 s{S_T0}, s2, 11")
        srd(g, SRD_W, S_WS, S_T0, 2048)
        g.e(f"s_lshr_b32 s{S_T0}, s2, 3")
        g.e(f"s_lshl_b32 s{S_T0}, s{S_T0}, 8")
        g.e(f"s_add_u32 s{S_T0}, s{S_T0}, {STATS_OFF}")
        srd(g, SRD_T, S_WS, S_T0, 256)
    else:
        g.e(f"s_lshl_b32 s{S_T0}, s2, 12")
        srd(g, SRD_W, S_WS, S_T0, 4096)
    g.e(f"s_lshl_b32 s{S_T0}, s2, 5")
    srd(g, SRD_O, S_OUT, S_T0, 32)
    g.e(f"v_lshrrev_b32 v8, 2, v{V_LANE}")
    g.e(f"v_and_b32 v9, 3, v{V_LANE}")
    if o.compact:
        g.e(f"v_lshlrev_b32 v10, 3, v8")
        g.e(f"v_lshlrev_b32 v11, 4, v{V_LANE}")
    else:
        g.e(f"v_lshlrev_b32 v10, 7, v8")
        g.e(f"v_lshl_add_u32 v11, v9, 4, v10")
    g.e(f"v_lshrrev_b32 v12, 4, v{V_LANE}")
    g.e(f"v_and_b32 v13, 1, v12")
    g.e(f"v_lshrrev_b32 v12, 1, v12")
    g.e(f"v_lshl_or_b32 v12, v13, 1, v12")
    g.e(f"v_lshl_add_u32 v12, v9, 2, v12")
    g.e(f"v_lshlrev_b32 v12, 1, v12")

def ready_total(g, src, dst):
    g.e(f"v_sad_u8 v{dst}, v{src}, 0, 0")
    g.e(f"v_sad_u8 v{dst}, v{src+1}, 0, v{dst}")
    g.e(f"v_sad_u8 v{dst}, v{src+2}, 0, v{dst}")

def consumer(g, fused, pfx, o, barrier=None):
    A=16; B=20; T0=24; T1=26; t=30
    g.c("---- combine 32 records, store 16 outputs ----")
    if fused:
        RD=o.V_RDY
        g.e(f"s_mov_b32 s{S_T2}, 0x40000")
        g.e(f"s_waitcnt vmcnt(0)")
        g.e(f"{pfx}_rdy:")
        ready_total(g, RD, 13)
        g.e(f"v_cmp_gt_u32 vcc, 32, v13")
        g.e(f"s_cbranch_vccz {pfx}_rdyok" if barrier else f"s_cbranch_vccz {pfx}_poll")
        g.e(f"s_sub_u32 s{S_T2}, s{S_T2}, 1")
        g.e(f"s_cbranch_scc1 {pfx}_rdyok" if barrier else f"s_cbranch_scc1 {pfx}_go")
        g.e(f"buffer_load_dwordx3 v[{RD}:{RD+2}], off, s[{SRD_D}:{SRD_D+3}], 0 sc1")
        g.e(f"s_waitcnt vmcnt(0)")
        g.e(f"s_branch {pfx}_rdy")
        if barrier:
            g.e(f"{pfx}_rdyok:")
            barrier()
    g.e(f"{pfx}_poll:")
    fl = "sc1" if fused else ""
    if o.compact:
        g.e(f"buffer_load_dwordx2 v[{T0}:{T0+1}], v10, s[{SRD_T}:{SRD_T+3}], 0 offen {fl}")
        g.e(f"buffer_load_dwordx2 v[{T1}:{T1+1}], v10, s[{SRD_T}:{SRD_T+3}], 0 offen offset:128 {fl}")
        g.e(f"buffer_load_dwordx4 v[{A}:{A+3}], v11, s[{SRD_W}:{SRD_W+3}], 0 offen {fl}")
        g.e(f"buffer_load_dwordx4 v[{B}:{B+3}], v11, s[{SRD_W}:{SRD_W+3}], 0 offen offset:1024 {fl}")
    else:
        g.e(f"buffer_load_dwordx4 v[{A}:{A+3}], v11, s[{SRD_W}:{SRD_W+3}], 0 offen {fl}")
        g.e(f"buffer_load_dwordx4 v[{B}:{B+3}], v11, s[{SRD_W}:{SRD_W+3}], 0 offen offset:2048 {fl}")
        g.e(f"buffer_load_dwordx2 v[{T0}:{T0+1}], v10, s[{SRD_W}:{SRD_W+3}], 0 offen offset:64 {fl}")
        g.e(f"buffer_load_dwordx2 v[{T1}:{T1+1}], v10, s[{SRD_W}:{SRD_W+3}], 0 offen offset:2112 {fl}")
    g.e("s_waitcnt vmcnt(0)")
    if fused:
        g.e(f"v_max3_u32 v{t}, v{A}, v{A+1}, v{A+2}")
        g.e(f"v_max3_u32 v{t+1}, v{A+3}, v{B}, v{B+1}")
        g.e(f"v_max3_u32 v{t}, v{t}, v{B+2}, v{B+3}")
        g.e(f"v_max3_u32 v{t+1}, v{t+1}, v{T0}, v{T0+1}")
        g.e(f"v_max3_u32 v{t}, v{t}, v{T1}, v{T1+1}")
        g.e(f"v_max_u32 v{t}, v{t}, v{t+1}")
        g.e(f"v_cmp_eq_u32 vcc, -1, v{t}")
        g.e(f"s_cbranch_vccz {pfx}_go")
        g.e(f"s_sub_u32 s{S_T2}, s{S_T2}, 1")
        g.e(f"s_cbranch_scc0 {pfx}_poll")
        g.e(f"{pfx}_go:")
        stamp(g,o,6)
    g.e(f"v_max_f32 v{t}, v{T0+1}, v{T1+1}")
    g.e("s_nop 1")
    g.e(f"v_max_f32_dpp v{t}, v{t}, v{t} row_ror:4 row_mask:0xf bank_mask:0xf")
    g.e("s_nop 1")
    g.e(f"v_max_f32_dpp v{t}, v{t}, v{t} row_ror:8 row_mask:0xf bank_mask:0xf")
    g.e(f"s_nop 0")
    g.e(f"v_mov_b32 v{t+1}, v{t}")
    g.e("s_nop 1")
    g.e(f"v_permlane16_swap_b32 v{t+1}, v{t}")
    g.e(f"v_max_f32 v{t}, v{t}, v{t+1}")
    g.e(f"v_mov_b32 v{t+1}, v{t}")
    g.e("s_nop 1")
    g.e(f"v_permlane32_swap_b32 v{t+1}, v{t}")
    g.e(f"v_max_f32 v{t}, v{t}, v{t+1}")
    g.e(f"v_sub_f32 v{T0+1}, v{T0+1}, v{t}")
    g.e(f"v_sub_f32 v{T1+1}, v{T1+1}, v{t}")
    g.e(f"v_exp_f32 v{T0+1}, v{T0+1}")
    g.e(f"v_exp_f32 v{T1+1}, v{T1+1}")
    g.e("s_nop 0")
    g.e(f"v_mul_f32 v{T0}, v{T0}, v{T0+1}")
    for e in range(4): g.e(f"v_mul_f32 v{A+e}, v{A+e}, v{T0+1}")
    g.e(f"v_fmac_f32 v{T0}, v{T1}, v{T1+1}")
    for e in range(4): g.e(f"v_fmac_f32 v{A+e}, v{B+e}, v{T1+1}")
    g.e(f"v_add_f32_dpp v{T0}, v{T0}, v{T0} row_ror:4 row_mask:0xf bank_mask:0xf")
    g.e("s_nop 0")
    g.e(f"v_permlane32_swap_b32 v{A}, v{A+1}")
    g.e(f"v_permlane32_swap_b32 v{A+2}, v{A+3}")
    g.e(f"v_add_f32_dpp v{T0}, v{T0}, v{T0} row_ror:8 row_mask:0xf bank_mask:0xf")
    g.e(f"v_add_f32 v{A}, v{A}, v{A+1}")
    g.e(f"v_add_f32 v{A+2}, v{A+2}, v{A+3}")
    g.e(f"v_mov_b32 v{t}, v{T0}")
    g.e("s_nop 1")
    g.e(f"v_permlane16_swap_b32 v{A}, v{A+2}")
    g.e(f"v_permlane16_swap_b32 v{t}, v{T0}")
    g.e(f"v_add_f32 v{A}, v{A}, v{A+2}")
    g.e(f"v_add_f32 v{T0}, v{T0}, v{t}")
    g.e("s_nop 0")
    g.e(f"v_mov_b32 v{t}, v{T0}")
    g.e(f"v_add_f32_dpp v{A}, v{A}, v{A} row_ror:4 row_mask:0xf bank_mask:0xf")
    g.e("s_nop 0")
    g.e(f"v_permlane32_swap_b32 v{t}, v{T0}")
    g.e(f"v_add_f32_dpp v{A}, v{A}, v{A} row_ror:8 row_mask:0xf bank_mask:0xf")
    g.e(f"v_add_f32 v{T0}, v{T0}, v{t}")
    g.e(f"v_rcp_f32 v{T0}, v{T0}")
    g.e("s_nop 0")
    g.e(f"v_mul_f32 v{A}, v{A}, v{T0}")
    g.e(f"v_cvt_pk_bf16_f32 v{A}, v{A}, v{A}")
    g.e(f"s_mov_b32 exec_lo, 0x000f000f")
    g.e(f"s_mov_b32 exec_hi, 0x000f000f")
    g.e(f"buffer_store_short v{A}, v12, s[{SRD_O}:{SRD_O+3}], 0 offen {o.outfl}")

def publish(g, o, data, n, addr, srd_, off, lbl):
    ins = f"buffer_store_dwordx{n} v[{data}:{data+n-1}], v{addr}, s[{srd_}:{srd_+3}], 0 offen offset:{off}"
    if o.fused and o.fast==1:
        g.e(f"s_cmp_eq_u32 s{S_FAST}, 1")
        g.e(f"s_cbranch_scc1 {lbl}_f")
        g.e(ins+" sc1")
        g.e(f"s_branch {lbl}_d")
        g.e(f"{lbl}_f:")
        g.e(ins)
        g.e(f"{lbl}_d:")
    elif o.fast==2:
        g.e(ins)
    else:
        g.e(ins+" sc1")

def ready_spin(g, o, pfx, tmp):
    RD=o.V_RDY
    g.e(f"s_mov_b32 s{S_T2}, 0x40000")
    g.e(f"{pfx}_rdy:")
    ready_total(g, RD, tmp)
    g.e(f"v_cmp_gt_u32 vcc, 32, v{tmp}")
    g.e(f"s_cbranch_vccz {pfx}_rdyok")
    g.e(f"s_sub_u32 s{S_T2}, s{S_T2}, 1")
    g.e(f"s_cbranch_scc1 {pfx}_rdyok")
    g.e(f"buffer_load_dwordx3 v[{RD}:{RD+2}], off, s[{SRD_D}:{SRD_D+3}], 0 sc1")
    g.e(f"s_waitcnt vmcnt(0)")
    g.e(f"s_branch {pfx}_rdy")
    g.e(f"{pfx}_rdyok:")

def early_tail(g, o, fast_calc, final_barrier):
    assert o.fused and o.compact
    g.c("---- tail roles ----")
    g.e(f"s_cmp_ge_u32 s{S_WAVE}, 4")
    g.e("s_cbranch_scc1 L_idle")
    g.e("s_waitcnt vmcnt(0) lgkmcnt(0)")
    g.e("s_barrier")
    ready_spin(g, o, "L_e", 13)
    fast_calc()
    g.e(f"s_cmp_eq_u32 s{S_WAVE}, 2")
    g.e("s_cbranch_scc1 L_stats")
    g.e(f"s_cmp_eq_u32 s{S_WAVE}, 3")
    g.e("s_cbranch_scc1 L_cons")
    g.e(f"s_lshl_b32 s{S_T0}, s{S_WAVE}, 6")
    g.e(f"v_add_u32 v1, s{S_T0}, v0")
    g.e(f"v_lshrrev_b32 v5, 5, v1")
    g.e(f"v_lshlrev_b32 v5, 5, v5")
    g.e(f"v_lshlrev_b32 v2, 4, v1")
    g.e(f"ds_read_b128 v[8:11], v5 offset:{LDS_M}")
    g.e(f"ds_read_b128 v[12:15], v5 offset:{LDS_M+16}")
    for w in range(4):
        g.e(f"ds_read_b128 v[{16+4*w}:{19+4*w}], v2 offset:{LDS_O+2048*w}")
    g.e(f"v_lshrrev_b32 v6, 2, v1")
    g.e(f"v_and_b32 v4, 3, v1")
    g.e(f"v_lshlrev_b32 v6, 11, v6")
    g.e(f"v_lshl_add_u32 v4, v4, 4, v6")
    g.e("s_waitcnt lgkmcnt(4)")
    g.e("v_max3_f32 v6, v8, v9, v10"); g.e("v_max3_f32 v7, v11, v12, v13"); g.e("v_max3_f32 v6, v6, v14, v15"); g.e("v_max_f32 v6, v6, v7")
    g.e(f"v_mul_f32 v6, s{S_C}, v6")
    for w in range(8): g.e(f"v_fma_f32 v{8+w}, v{8+w}, s{S_C}, -v6")
    for w in range(8): g.e(f"v_exp_f32 v{8+w}, v{8+w}")
    g.e("s_waitcnt lgkmcnt(0)")
    for e in range(4): g.e(f"v_mul_f32 v{16+e}, v{16+e}, v8")
    for w in range(1,4):
        for e in range(4): g.e(f"v_fmac_f32 v{16+e}, v{16+4*w+e}, v{8+w}")
    final_barrier()
    for w in range(4,8):
        g.e(f"ds_read_b128 v[{16+4*(w-3)}:{19+4*(w-3)}], v2 offset:{LDS_O+2048*w}")
    for w in range(4,8):
        g.e(f"s_waitcnt lgkmcnt({7-w})")
        for e in range(4): g.e(f"v_fmac_f32 v{16+e}, v{16+4*(w-3)+e}, v{8+w}")
    for e in range(4): g.e(f"v_min_u32 v{16+e}, -2, v{16+e}")
    publish(g,o,16,4,4,SRD_W,0,"L_po")
    stamp(g,o,6)
    if o.stamps: g.e("s_waitcnt vmcnt(0)")
    stamp(g,o,7); stamp_store(g,o)
    g.e("s_endpgm")
    g.e("L_stats:")
    g.e(f"v_and_b32 v1, 3, v0")
    g.e(f"v_lshlrev_b32 v4, 8, v1")
    g.e(f"v_lshlrev_b32 v2, 5, v1")
    g.e(f"v_lshlrev_b32 v3, {4 if o.shared else 2}, v1")
    g.e(f"ds_read_b128 v[24:27], v2 offset:{LDS_M}")
    g.e(f"ds_read_b128 v[28:31], v2 offset:{LDS_M+16}")
    g.e(f"ds_read_b128 v[16:19], v2 offset:{LDS_Lr}")
    g.e(f"ds_read_b128 v[20:23], v2 offset:{LDS_Lr+16}")
    if o.shared: g.e(f"ds_read_b128 v[32:35], v3 offset:{LDS_B}")
    else: g.e(f"ds_read_b32 v32, v3 offset:{LDS_B}")
    g.e("s_waitcnt lgkmcnt(3)")
    g.e("v_max3_f32 v6, v24, v25, v26"); g.e("v_max3_f32 v7, v27, v28, v29"); g.e("v_max3_f32 v6, v6, v30, v31"); g.e("v_max_f32 v6, v6, v7")
    g.e(f"v_mul_f32 v7, s{S_C}, v6")
    for w in range(8): g.e(f"v_fma_f32 v{24+w}, v{24+w}, s{S_C}, -v7")
    for w in range(8): g.e(f"v_exp_f32 v{24+w}, v{24+w}")
    g.e("s_waitcnt lgkmcnt(0)")
    if o.shared:
        g.e("v_add_f32 v32, v32, v33"); g.e("v_add_f32 v34, v34, v35"); g.e("v_add_f32 v32, v32, v34")
    g.e("v_sub_f32 v6, v6, v32")
    g.e("v_mul_f32 v16, v16, v24"); g.e("v_mul_f32 v18, v18, v26")
    g.e("v_fmac_f32 v16, v17, v25"); g.e("v_fmac_f32 v18, v19, v27")
    g.e("v_fmac_f32 v16, v20, v28"); g.e("v_fmac_f32 v18, v21, v29")
    g.e("v_fmac_f32 v16, v22, v30"); g.e("v_fmac_f32 v18, v23, v31")
    g.e(f"v_mul_f32 v17, s{S_C}, v6")
    g.e("v_add_f32 v16, v16, v18")
    g.e("v_min_u32 v17, -2, v17")
    g.e("v_min_u32 v16, -2, v16")
    g.e("s_mov_b64 exec, 15")
    publish(g,o,16,2,4,SRD_T,0,"L_ps")
    g.e("s_mov_b64 exec, -1")
    final_barrier()
    stamp(g,o,6); stamp(g,o,7); stamp_store(g,o)
    g.e("s_endpgm")
    g.e("L_cons:")
    consumer_setup(g,o)
    A=16; B=20; T0=24; T1=26; t=30
    g.c("---- stage 1: maxima and sums of the 32 workgroups ----")
    g.e(f"s_mov_b32 s{S_T2}, 0x40000")
    g.e("L_c1:")
    g.e(f"buffer_load_dwordx2 v[{T0}:{T0+1}], v10, s[{SRD_T}:{SRD_T+3}], 0 offen sc1")
    g.e(f"buffer_load_dwordx2 v[{T1}:{T1+1}], v10, s[{SRD_T}:{SRD_T+3}], 0 offen offset:128 sc1")
    g.e("s_waitcnt vmcnt(0)")
    g.e(f"v_max3_u32 v{t}, v{T0}, v{T0+1}, v{T1}")
    g.e(f"v_max_u32 v{t}, v{t}, v{T1+1}")
    g.e(f"v_cmp_eq_u32 vcc, -1, v{t}")
    g.e("s_cbranch_vccz L_c1ok")
    g.e(f"s_sub_u32 s{S_T2}, s{S_T2}, 1")
    g.e("s_cbranch_scc0 L_c1")
    g.e("L_c1ok:")
    g.e(f"v_max_f32 v{t}, v{T0+1}, v{T1+1}")
    g.e("s_nop 1")
    g.e(f"v_max_f32_dpp v{t}, v{t}, v{t} row_ror:4 row_mask:0xf bank_mask:0xf")
    g.e("s_nop 1")
    g.e(f"v_max_f32_dpp v{t}, v{t}, v{t} row_ror:8 row_mask:0xf bank_mask:0xf")
    g.e(f"s_nop 0")
    g.e(f"v_mov_b32 v{t+1}, v{t}")
    g.e("s_nop 1")
    g.e(f"v_permlane16_swap_b32 v{t+1}, v{t}")
    g.e(f"v_max_f32 v{t}, v{t}, v{t+1}")
    g.e(f"v_mov_b32 v{t+1}, v{t}")
    g.e("s_nop 1")
    g.e(f"v_permlane32_swap_b32 v{t+1}, v{t}")
    g.e(f"v_max_f32 v{t}, v{t}, v{t+1}")
    g.e(f"v_sub_f32 v{T0+1}, v{T0+1}, v{t}")
    g.e(f"v_sub_f32 v{T1+1}, v{T1+1}, v{t}")
    g.e(f"v_exp_f32 v{T0+1}, v{T0+1}")
    g.e(f"v_exp_f32 v{T1+1}, v{T1+1}")
    g.e("s_nop 0")
    g.e(f"v_mul_f32 v{T0}, v{T0}, v{T0+1}")
    g.e(f"v_fmac_f32 v{T0}, v{T1}, v{T1+1}")
    g.e("s_nop 1")
    g.e(f"v_add_f32_dpp v{T0}, v{T0}, v{T0} row_ror:4 row_mask:0xf bank_mask:0xf")
    g.e("s_nop 1")
    g.e(f"v_add_f32_dpp v{T0}, v{T0}, v{T0} row_ror:8 row_mask:0xf bank_mask:0xf")
    g.e(f"s_nop 0")
    g.e(f"v_mov_b32 v{t}, v{T0}")
    g.e("s_nop 1")
    g.e(f"v_permlane16_swap_b32 v{t}, v{T0}")
    g.e(f"v_add_f32 v{T0}, v{T0}, v{t}")
    g.e(f"v_mov_b32 v{t}, v{T0}")
    g.e("s_nop 1")
    g.e(f"v_permlane32_swap_b32 v{t}, v{T0}")
    g.e(f"v_add_f32 v{T0}, v{T0}, v{t}")
    g.e(f"v_rcp_f32 v{T0}, v{T0}")
    g.e("s_nop 0")
    g.e(f"v_mul_f32 v{T0+1}, v{T0+1}, v{T0}")
    g.e(f"v_mul_f32 v{T1+1}, v{T1+1}, v{T0}")
    g.e(f"s_mov_b32 s{S_T2}, 0x40000")
    final_barrier()
    g.c("---- stage 2: the 32 partial outputs ----")
    g.e("L_c2:")
    g.e(f"buffer_load_dwordx4 v[{A}:{A+3}], v11, s[{SRD_W}:{SRD_W+3}], 0 offen sc1")
    g.e(f"buffer_load_dwordx4 v[{B}:{B+3}], v11, s[{SRD_W}:{SRD_W+3}], 0 offen offset:1024 sc1")
    g.e("s_waitcnt vmcnt(0)")
    g.e(f"v_max3_u32 v{t}, v{A}, v{A+1}, v{A+2}")
    g.e(f"v_max3_u32 v{t+1}, v{B}, v{B+1}, v{B+2}")
    g.e(f"v_max3_u32 v{t}, v{t}, v{A+3}, v{B+3}")
    g.e(f"v_max_u32 v{t}, v{t}, v{t+1}")
    g.e(f"v_cmp_eq_u32 vcc, -1, v{t}")
    g.e("s_cbranch_vccz L_c2ok")
    g.e(f"s_sub_u32 s{S_T2}, s{S_T2}, 1")
    g.e("s_cbranch_scc0 L_c2")
    g.e("L_c2ok:")
    stamp(g,o,6)
    for e in range(4): g.e(f"v_mul_f32 v{A+e}, v{A+e}, v{T0+1}")
    for e in range(4): g.e(f"v_fmac_f32 v{A+e}, v{B+e}, v{T1+1}")
    g.e("s_nop 0")
    g.e(f"v_permlane32_swap_b32 v{A}, v{A+1}")
    g.e(f"v_permlane32_swap_b32 v{A+2}, v{A+3}")
    g.e(f"v_add_f32 v{A}, v{A}, v{A+1}")
    g.e(f"v_add_f32 v{A+2}, v{A+2}, v{A+3}")
    g.e("s_nop 1")
    g.e(f"v_permlane16_swap_b32 v{A}, v{A+2}")
    g.e(f"v_add_f32 v{A}, v{A}, v{A+2}")
    g.e("s_nop 1")
    g.e(f"v_add_f32_dpp v{A}, v{A}, v{A} row_ror:4 row_mask:0xf bank_mask:0xf")
    g.e("s_nop 1")
    g.e(f"v_add_f32_dpp v{A}, v{A}, v{A} row_ror:8 row_mask:0xf bank_mask:0xf")
    g.e(f"s_mov_b32 exec_lo, 0x000f000f")
    g.e(f"s_mov_b32 exec_hi, 0x000f000f")
    g.e(f"v_cvt_pk_bf16_f32 v{A}, v{A}, v{A}")
    g.e(f"buffer_store_short v{A}, v12, s[{SRD_O}:{SRD_O+3}], 0 offen {o.outfl}")
    if o.stamps: g.e("s_waitcnt vmcnt(0)")
    stamp(g,o,7); stamp_store(g,o)
    g.e("s_endpgm")
    g.e("L_idle:")
    final_barrier()
    stamp(g,o,6); stamp(g,o,7); stamp_store(g,o)
    g.e("L_end:")
    g.e("s_endpgm")

def main_kernel(g, o):
    fused = o.fused
    NS = o.nslots
    ldf = o.ldflags
    kernel_begin(g, o.main_name)
    g.e("s_cmp_ge_u32 s2, 256")
    g.e("s_cbranch_scc1 L_end")
    stamp(g,o,0)
    g.e(f"s_load_dwordx16 s[4:19], s[0:1], 0")
    g.e(f"s_load_dwordx4 s[20:23], s[0:1], 64")
    if o.xmap:
        g.e("s_and_b32 s3, s2, 7"); g.e("s_lshl_b32 s3, s3, 5"); g.e("s_lshr_b32 s2, s2, 3"); g.e("s_add_u32 s2, s2, s3")
    g.e(f"v_lshrrev_b32 v1, 6, v0")
    g.e(f"v_and_b32 v0, 63, v0")
    g.e(f"v_readfirstlane_b32 s{S_WAVE}, v1")
    g.e("v_bfe_u32 v3, v0, 2, 1")
    g.e("v_and_b32 v4, 3, v0")
    g.e(f"v_lshlrev_b32 v{V_K}, 12, v3")
    g.e(f"v_lshl_add_u32 v{V_K}, v4, 9, v{V_K}")
    g.e("v_lshrrev_b32 v3, 3, v0")
    g.e(f"v_lshl_add_u32 v{V_K}, v3, 4, v{V_K}")
    g.e(f"s_lshl_b32 s{S_T0}, s2, 9")
    g.e(f"s_lshl_b32 s{S_T1}, s{S_WAVE}, 6")
    g.e(f"s_add_u32 s{S_T0}, s{S_T0}, s{S_T1}")
    g.e(f"s_lshl_b32 s{S_T1}, s{S_T0}, 9")
    g.e(f"s_lshl_b32 s{S_T2}, s{S_T0}, 1")
    g.e(f"s_mov_b32 s{S_8192}, 8192")
    g.e(f"s_mov_b32 s{S_16384}, 16384")
    g.e(f"s_mov_b32 s{S_24576}, 24576")
    g.e("v_lshrrev_b32 v3, 4, v0")
    g.e(f"v_and_b32 v{X}, 15, v0")
    g.e(f"v_lshlrev_b32 v{V_V}, 12, v3")
    g.e(f"v_lshl_add_u32 v{V_V}, v{X}, 4, v{V_V}")
    g.e(f"v_lshlrev_b32 v{X+1}, 4, v3")
    g.e(f"v_lshl_add_u32 v{X+2}, v4, 8, v{X+1}")
    g.e(f"v_bfe_i32 v{V_M1}, v0, 2, 1")
    g.e(f"v_and_b32 v{V_M1}, 0xffff0000, v{V_M1}")
    g.e(f"s_lshr_b32 s{S_HK}, s2, 5")
    g.e(f"s_and_b32 s{S_SPLIT}, s2, 31")
    g.e(f"s_mov_b32 s{S_HI}, 0xffff0000")
    g.e(f"s_mov_b32 s{S_C}, 0x{f2u(CEXP):08x}")
    g.e(f"s_mov_b32 s{S_PERM}, 0x07060302")
    g.e(f"s_mov_b32 s{S_NEG}, 0x80008000")
    if fused:
        g.e(f"s_getreg_b32 s{S_XCC}, hwreg(HW_REG_XCC_ID, 0, 4)")
        g.e(f"s_min_u32 s{S_XCC}, s{S_XCC}, 8")
    g.e("s_waitcnt lgkmcnt(0)")
    stamp2(g,o,1)
    srd(g, SRD_K, S_QK, S_T1, 32768)

    loads = []
    sok = {0:"0",8192:f"s{S_8192}",16384:f"s{S_16384}",24576:f"s{S_24576}"}
    for up in range(4):
        it = [(j,u) for j in range(4) for u in range(2)] if o.korder=="ju" else [(j,u) for u in range(2) for j in range(4)]
        for (j,u) in it:
            loads.append((("K",up,j,u), f"v{V_K}, s[{SRD_K}:{SRD_K+3}], {sok[16384*(up>>1)+8192*u]} offen offset:{2048*(up&1)+128*j}"))
    units = [(0,0),(0,1),(1,0),(1,1)] if o.vunits=="w" else [(0,0),(1,0),(0,1),(1,1)]
    for (wp,half) in units:
        for s_ in range(8):
            loads.append((("V",wp,half,s_), f"v{V_V}, s[{SRD_V}:{SRD_V+3}], {sok[16384*wp]} offen offset:{512*s_+256*half}"))
    slot_of = {}
    free = [RING+4*i for i in range(NS)]
    state = {"next":0}
    def issue(n=1):
        k=0
        for _ in range(n):
            i = state["next"]
            if i >= len(loads) or not free: break
            tag, rest = loads[i]
            slot = free.pop(0)
            slot_of[tag] = slot
            g.vmem(f"buffer_load_dwordx4 v[{slot}:{slot+3}], {rest} {ldf}", tag)
            state["next"] += 1; k+=1
        return k
    def release(*tags):
        for t_ in tags: free.append(slot_of[t_])

    def abc_srds():
        g.e(f"s_lshl_b32 s{S_T0}, s{S_HK}, 10")
        srd(g, SRD_A, S_Q, S_T0, 1024)
        g.e(f"s_lshr_b32 s{S_T0}, s2, 4")
        g.e(f"s_lshl_b32 s{S_T0}, s{S_T0}, 8")
        srd(g, SRD_B, S_KS, S_T0, 256)
        srd(g, SRD_C, S_KZ, S_T0, 256)
    def other_srds():
        srd(g, SRD_V, S_QV, S_T1, 32768)
        if not o.shared:
            srd(g, SRD_VS, S_VS, S_T2, 128)
            srd(g, SRD_VZ, S_VZ, S_T2, 128)
            abc_srds()
        if o.compact:
            g.e(f"s_lshl_b32 s{S_T0}, s{S_HK}, 16")
            g.e(f"s_lshl_b32 s{S_T1}, s{S_SPLIT}, 6")
            g.e(f"s_add_u32 s{S_T0}, s{S_T0}, s{S_T1}")
            srd(g, SRD_W, S_WS, S_T0, 31*2048+64)
            g.e(f"s_lshl_b32 s{S_T0}, s{S_HK}, 10")
            g.e(f"s_lshl_b32 s{S_T1}, s{S_SPLIT}, 3")
            g.e(f"s_add_u32 s{S_T0}, s{S_T0}, s{S_T1}")
            g.e(f"s_add_u32 s{S_T0}, s{S_T0}, {STATS_OFF}")
            srd(g, SRD_T, S_WS, S_T0, 3*256+8)
        else:
            g.e(f"s_lshl_b32 s{S_T0}, s{S_HK}, 17")
            g.e(f"s_lshl_b32 s{S_T1}, s{S_SPLIT}, 7")
            g.e(f"s_add_u32 s{S_T0}, s{S_T0}, s{S_T1}")
            srd(g, SRD_W, S_WS, S_T0, 31*4096+128)
        if fused:
            g.e(f"s_lshl_b32 s{S_T0}, s{S_HK}, 5")
            srd(g, SRD_D, S_DBG, S_T0, 12)
    def clear():
        if "noclear" in o.dbg: return
        g.e(f"s_cmp_eq_u32 s{S_WAVE}, {o.clearwave}")
        g.e("s_cbranch_scc0 L_noclear")
        if o.inbox:
            for k in range(4): g.e(f"v_mov_b32 v{R+k}, -1")
            g.e(f"s_lshl_b32 s{S_T0}, s2, 11")
            srd(g, SRD_O, S_WS, S_T0, 2048)
            g.e(f"v_lshlrev_b32 v{X+4}, 4, v0")
            g.e(f"buffer_store_dwordx4 v[{R}:{R+3}], v{X+4}, s[{SRD_O}:{SRD_O+3}], 0 offen sc1")
            g.e(f"buffer_store_dwordx4 v[{R}:{R+3}], v{X+4}, s[{SRD_O}:{SRD_O+3}], 0 offen offset:1024 sc1")
            g.e(f"s_and_b32 s{S_T0}, s2, 7")
            g.e(f"s_cmp_eq_u32 s{S_T0}, 0")
            g.e("s_cbranch_scc0 L_nostatclr")
            g.e(f"s_lshr_b32 s{S_T0}, s2, 3")
            g.e(f"s_lshl_b32 s{S_T0}, s{S_T0}, 8")
            g.e(f"s_add_u32 s{S_T0}, s{S_T0}, {STATS_OFF}")
            srd(g, SRD_O, S_WS, S_T0, 256)
            g.e(f"buffer_store_dwordx4 v[{R}:{R+3}], v{X+4}, s[{SRD_O}:{SRD_O+3}], 0 offen sc1")
            g.e("L_nostatclr:")
        else:
            for k in range(4): g.e(f"v_mov_b32 v{R+k}, -1")
            sh = 11 if o.compact else 12
            g.e(f"v_lshrrev_b32 v{X+4}, 2, v0")
            g.e(f"v_and_b32 v{X+5}, 3, v0")
            g.e(f"v_lshlrev_b32 v{X+4}, {sh}, v{X+4}")
            g.e(f"v_lshl_add_u32 v{X+4}, v{X+5}, 4, v{X+4}")
            g.e(f"s_mov_b32 s{S_T0}, {16<<sh}")
            g.e(f"buffer_store_dwordx4 v[{R}:{R+3}], v{X+4}, s[{SRD_W}:{SRD_W+3}], 0 offen sc1")
            g.e(f"buffer_store_dwordx4 v[{R}:{R+3}], v{X+4}, s[{SRD_W}:{SRD_W+3}], s{S_T0} offen sc1")
            if o.compact:
                g.e(f"v_lshlrev_b32 v{X+5}, 8, v{X+5}")
                g.e(f"buffer_store_dwordx2 v[{R}:{R+1}], v{X+5}, s[{SRD_T}:{SRD_T+3}], 0 offen sc1")
            else:
                g.e(f"v_and_b32 v{X+5}, 31, v0")
                g.e(f"v_lshlrev_b32 v{X+5}, 12, v{X+5}")
                g.e(f"buffer_store_dwordx4 v[{R}:{R+3}], v{X+5}, s[{SRD_W}:{SRD_W+3}], 0 offen offset:64 sc1")
        g.e(f"s_and_b32 s{S_T0}, s{S_XCC}, 3")
        g.e(f"s_lshl_b32 s{S_T0}, s{S_T0}, 3")
        g.e(f"s_lshl_b32 s{S_T0}, 1, s{S_T0}")
        g.e(f"s_lshr_b32 s{S_T1}, s{S_XCC}, 2")
        g.e(f"s_lshl_b32 s{S_T1}, s{S_T1}, 2")
        g.e(f"v_mov_b32 v{X+6}, s{S_T0}")
        g.e("s_waitcnt vmcnt(0)")
        g.e(f"s_mov_b64 exec, 1")
        g.e(f"buffer_atomic_add v{X+6}, off, s[{SRD_D}:{SRD_D+3}], s{S_T1} sc1")
        g.e(f"s_mov_b64 exec, -1")
        g.e("L_noclear:")
    QR=ACC; KSR=ACC+16; KZR=S
    def vs_loads():
        for k in range(2):
            g.vmem(f"buffer_load_dwordx4 v[{VS+4*k}:{VS+4*k+3}], v{X+1}, s[{SRD_VS}:{SRD_VS+3}], 0 offen offset:{64*k}", "vs")
            g.vmem(f"buffer_load_dwordx4 v[{VZ+4*k}:{VZ+4*k+3}], v{X+1}, s[{SRD_VZ}:{SRD_VZ+3}], 0 offen offset:{64*k}", "vz")
    def small_loads():
        if "nosmall" in o.dbg: return
        for j in range(4):
            g.vmem(f"buffer_load_dwordx4 v[{QR+4*j}:{QR+4*j+3}], v{X+2}, s[{SRD_A}:{SRD_A+3}], 0 offen offset:{64*j}", "q")
            g.vmem(f"buffer_load_dwordx4 v[{KSR+4*j}:{KSR+4*j+3}], v{X+1}, s[{SRD_B}:{SRD_B+3}], 0 offen offset:{64*j}", f"ks{j}")
        for j in range(4):
            g.vmem(f"buffer_load_dwordx4 v[{KZR+4*j}:{KZR+4*j+3}], v{X+1}, s[{SRD_C}:{SRD_C+3}], 0 offen offset:{64*j}", "kz")
        if o.vsearly: vs_loads()
    def qprime(qreg, ksreg, dst):
        for i in range(0,4,2):
            for k in range(2):
                q=qreg+i+k; ks=ksreg+i+k; t=X+4*k
                g.e(f"v_lshlrev_b32 v{t}, 16, v{q}")
                g.e(f"v_and_b32 v{t+1}, s{S_HI}, v{q}")
                g.e(f"v_lshlrev_b32 v{t+2}, 16, v{ks}")
                g.e(f"v_and_b32 v{t+3}, s{S_HI}, v{ks}")
            for k in range(2):
                t=X+4*k
                g.e(f"v_mul_f32 v{t}, v{t}, v{t+2}")
                g.e(f"v_mul_f32 v{t+1}, v{t+1}, v{t+3}")
            for k in range(2):
                t=X+4*k
                g.e(f"v_and_b32 v{t+2}, v{V_M1}, v{t}")
                g.e(f"v_and_b32 v{t+3}, v{V_M1}, v{t+1}")
            for k in range(2):
                t=X+4*k
                g.e(f"v_sub_f32 v{t}, v{t}, v{t+2}")
                g.e(f"v_sub_f32 v{t+1}, v{t+1}, v{t+3}")
            for k in range(2):
                t=X+4*k
                g.e(f"v_perm_b32 v{dst+i+k}, v{t+1}, v{t}, s{S_PERM}")
    if o.shared:
        issue(o.kpre)
        g.e(f"s_cmp_ge_u32 s{S_WAVE}, 4")
        g.e("s_cbranch_scc1 L_nosmall")
        abc_srds()
        g.e(f"s_lshl_b32 s{S_T0}, s{S_WAVE}, 6")
        g.e(f"buffer_load_dwordx4 v[{ACC}:{ACC+3}], v{X+2}, s[{SRD_A}:{SRD_A+3}], s{S_T0} offen")
        g.e(f"buffer_load_dwordx4 v[{ACC+4}:{ACC+7}], v{X+1}, s[{SRD_B}:{SRD_B+3}], s{S_T0} offen")
        g.e(f"buffer_load_dwordx4 v[{ACC+8}:{ACC+11}], v{X+1}, s[{SRD_C}:{SRD_C+3}], s{S_T0} offen")
        g.e(f"s_cmp_eq_u32 s{S_WAVE}, 0")
        g.e("s_cbranch_scc0 L_nosmall")
        g.e(f"s_lshl_b32 s{S_T0}, s2, 10")
        srd(g, SRD_VS, S_VS, S_T0, 1024)
        srd(g, SRD_VZ, S_VZ, S_T0, 1024)
        g.e(f"v_lshlrev_b32 v{X+3}, 4, v0")
        g.e(f"buffer_load_dwordx4 v[{ACC+12}:{ACC+15}], v{X+3}, s[{SRD_VS}:{SRD_VS+3}], 0 offen")
        g.e(f"buffer_load_dwordx4 v[{ACC+16}:{ACC+19}], v{X+3}, s[{SRD_VZ}:{SRD_VZ+3}], 0 offen")
        g.e("L_nosmall:")
        other_srds()
        issue(32-o.kpre)
        stamp(g,o,1)
        g.e(f"s_cmp_ge_u32 s{S_WAVE}, 4")
        g.e("s_cbranch_scc1 L_bar0")
        g.e(f"v_lshlrev_b32 v{V_T0}, 4, v0")
        g.e(f"s_lshl_b32 s{S_T0}, s{S_WAVE}, 10")
        g.e(f"v_add_u32 v{V_T1}, s{S_T0}, v{V_T0}")
        g.e(f"s_waitcnt vmcnt({32-o.kpre})")
        qprime(ACC, ACC+4, QP)
        g.e(f"v_and_b32 v{X}, 3, v0")
        g.e(f"s_lshl_b32 s{S_T0}, s{S_WAVE}, 2")
        g.e(f"v_mfma_f32_16x16x32_bf16 v[{CACC}:{CACC+3}], v[{ACC+8}:{ACC+11}], v[{QP}:{QP+3}], 0")
        g.e(f"ds_write_b128 v{V_T1}, v[{QP}:{QP+3}] offset:{LDS_Q}")
        g.e(f"v_lshl_add_u32 v{X}, v{X}, 4, s{S_T0}")
        g.e(f"s_cmp_eq_u32 s{S_WAVE}, 0")
        g.e("s_cbranch_scc0 L_novs")
        g.e(f"ds_write_b128 v{V_T0}, v[{ACC+12}:{ACC+15}] offset:{LDS_VS}")
        g.e(f"ds_write_b128 v{V_T0}, v[{ACC+16}:{ACC+19}] offset:{LDS_VZ}")
        g.e("L_novs:")
        g.e("s_nop 7")
        g.e(f"v_add_f32_dpp v{V_BIAS}, v{CACC}, v{CACC} row_ror:4 row_mask:0xf bank_mask:0xf")
        g.e("s_mov_b64 exec, 15")
        g.e(f"ds_write_b32 v{X}, v{V_BIAS} offset:{LDS_B}")
        g.e("s_mov_b64 exec, -1")
        if fused: clear()
        g.e("s_waitcnt lgkmcnt(0)")
        g.e("L_bar0:")
    elif o.kfirst:
        if fused and o.clearpos=="first":
            other_srds(); clear(); issue(32)
        else:
            issue(8); other_srds(); issue(24)
            if fused: clear_after=True
        if o.tlbw:
            g.vmem(f"buffer_load_dword v{X+7}, off, s[{SRD_V}:{SRD_V+3}], 0 {ldf}", "tlb")
        small_loads()
        if fused and o.clearpos!="first": clear()
    else:
        issue(o.kpre)
        stamp2(g,o,2)
        other_srds()
        if fused and o.clearpos=="first": clear()
        if o.tlbw:
            g.vmem(f"buffer_load_dword v{X+7}, off, s[{SRD_V}:{SRD_V+3}], 0 {ldf}", "tlb")
        small_loads()
        stamp2(g,o,3)
        issue(32-o.kpre)
        stamp2(g,o,4)
        if fused and o.clearpos!="first": clear()
    if not o.shared: stamp(g,o,1)
    if (o.bar0 or o.shared) and "nobar" not in o.dbg: g.e("s_barrier")
    if o.shared:
        g.e(f"v_lshlrev_b32 v{V_T0}, 4, v0")
        g.e(f"s_lshl_b32 s{S_T0}, s{S_WAVE}, 7")
        g.e(f"v_and_b32 v{V_T1}, 0x30, v0")
        g.e(f"v_add_u32 v{V_T1}, s{S_T0}, v{V_T1}")
        for j in range(4): g.e(f"ds_read_b128 v[{QP+4*j}:{QP+4*j+3}], v{V_T0} offset:{LDS_Q+1024*j}")
        for k in range(2):
            g.e(f"ds_read_b128 v[{VS+4*k}:{VS+4*k+3}], v{V_T1} offset:{LDS_VS+64*k}")
            g.e(f"ds_read_b128 v[{VZ+4*k}:{VZ+4*k+3}], v{V_T1} offset:{LDS_VZ+64*k}")
        issue(NS-32)
        g.e("s_waitcnt lgkmcnt(0)")
    else:
        if not o.vsearly: vs_loads()
        issue(NS-32)
        g.c("---- q' ----")
        for j in range(4):
            g.wait(f"ks{j}")
            qprime(QR+4*j, KSR+4*j, QP+4*j)
        g.c("---- bias = q'.kz ----")
        if not g.wait("kz"): g.e("s_nop 1")
        for j in range(4):
            c = "0" if j==0 else f"v[{CACC}:{CACC+3}]"
            g.e(f"v_mfma_f32_16x16x32_bf16 v[{CACC}:{CACC+3}], v[{KZR+4*j}:{KZR+4*j+3}], v[{QP+4*j}:{QP+4*j+3}], {c}")
    stamp(g,o,2)
    g.c("---- QK ----")
    first=True
    for up in range(4):
        for j in range(4):
            g.wait(("K",up,j,1) if o.korder=="ju" else ("K",up,j,1))
            a=slot_of[("K",up,j,0)]; b=slot_of[("K",up,j,1)]
            for e in range(4): g.e(f"v_cvt_f32_i32 v{X+e}, v{a+e}")
            for e in range(4): g.e(f"v_cvt_f32_i32 v{X+4+e}, v{b+e}")
            for e in range(4): g.e(f"v_cvt_f32_i32_dpp v{X+e}, v{b+e} row_ror:8 row_mask:0xf bank_mask:0xc")
            for e in range(4): g.e(f"v_cvt_f32_i32_dpp v{X+4+e}, v{a+e} row_ror:8 row_mask:0xf bank_mask:0x3")
            if first and not o.shared:
                g.e(f"v_add_f32_dpp v{V_BIAS}, v{CACC}, v{CACC} row_ror:4 row_mask:0xf bank_mask:0xf")
            first=False
            for k in range(4): g.e(f"v_cvt_pk_bf16_f32 v{R+k}, v{X+2*k}, v{X+2*k+1}")
            release(("K",up,j,0),("K",up,j,1))
            k_=issue(2)
            if k_ < 2: g.e("s_nop 1")
            c = "0" if j==0 else f"v[{S+4*up}:{S+4*up+3}]"
            g.e(f"v_mfma_f32_16x16x32_bf16 v[{S+4*up}:{S+4*up+3}], v[{R}:{R+3}], v[{QP+4*j}:{QP+4*j+3}], {c}")
    issue(100)
    assert state["next"]==len(loads)
    if fused:
        o.V_RDY = free.pop(0)
        if o.rdy4:
            g.e(f"s_cmp_lt_u32 s{S_WAVE}, 4")
            g.e("s_cbranch_scc0 L_nordy")
            g.e(f"buffer_load_dwordx3 v[{o.V_RDY}:{o.V_RDY+2}], off, s[{SRD_D}:{SRD_D+3}], 0 sc1")
            g.e("L_nordy:")
        else:
            g.e(f"buffer_load_dwordx3 v[{o.V_RDY}:{o.V_RDY+2}], off, s[{SRD_D}:{SRD_D+3}], 0 sc1")
            g.vm.append("rdy")
    stamp(g,o,3)
    g.c("---- max ----")
    g.e("s_nop 6" if fused else "s_nop 7")
    for i in range(16):
        g.e(f"v_add_f32_dpp v{S+i}, v{S+i}, v{S+i} row_ror:4 row_mask:0xf bank_mask:0xf")
    m=V_T0; t=V_T1
    g.e(f"v_max3_f32 v{m}, v{S}, v{S+1}, v{S+2}")
    g.e(f"v_max3_f32 v{t}, v{S+3}, v{S+4}, v{S+5}")
    g.e(f"v_max3_f32 v{m}, v{m}, v{S+6}, v{S+7}")
    g.e(f"v_max3_f32 v{t}, v{t}, v{S+8}, v{S+9}")
    g.e(f"v_max3_f32 v{m}, v{m}, v{S+10}, v{S+11}")
    g.e(f"v_max3_f32 v{t}, v{t}, v{S+12}, v{S+13}")
    g.e(f"v_max3_f32 v{m}, v{m}, v{S+14}, v{S+15}")
    g.e(f"v_max_f32 v{m}, v{m}, v{t}")
    def xreduce(op, m, t):
        g.e(f"v_mov_b32 v{t}, v{m}"); g.e("s_nop 1")
        g.e(f"v_permlane16_swap_b32 v{t}, v{m}")
        g.e(f"{op} v{m}, v{m}, v{t}")
        g.e(f"v_mov_b32 v{t}, v{m}"); g.e("s_nop 1")
        g.e(f"v_permlane32_swap_b32 v{t}, v{m}")
        g.e(f"{op} v{m}, v{m}, v{t}")
    xreduce("v_max_f32", m, t)
    g.e(f"v_and_b32 v{X+2}, 3, v0")
    g.e(f"v_lshlrev_b32 v{X+1}, 5, v{X+2}")
    g.e(f"s_lshl_b32 s{S_T0}, s{S_WAVE}, 2")
    g.e(f"v_add_u32 v{X+1}, s{S_T0}, v{X+1}")
    g.e(f"v_lshlrev_b32 v{X+2}, 2, v{X+2}")
    g.e("s_mov_b64 exec, 15")
    g.e(f"ds_write_b32 v{X+1}, v{m} offset:{LDS_M}")
    if not o.shared: g.e(f"ds_write_b32 v{X+2}, v{V_BIAS} offset:{LDS_B}")
    g.e("s_mov_b64 exec, -1")
    g.e(f"v_mov_b32 v{V_BIAS}, v{X+1}")
    if not o.shared: g.wait("vz")
    for k in range(8): g.e(f"v_xor_b32 v{VZ+k}, s{S_NEG}, v{VZ+k}")
    g.e(f"v_mul_f32 v{m}, s{S_C}, v{m}")
    g.c("---- softmax numerators ----")
    PA=QP
    for i0 in range(0,16,4):
        for i in range(i0,i0+4): g.e(f"v_fma_f32 v{S+i}, v{S+i}, s{S_C}, -v{m}")
        for i in range(i0,i0+4): g.e(f"v_exp_f32 v{S+i}, v{S+i}")
        for i in range(i0,i0+4):
            src=VS+(i>>1)
            if i&1: g.e(f"v_and_b32 v{X+i-i0}, s{S_HI}, v{src}")
            else:   g.e(f"v_lshlrev_b32 v{X+i-i0}, 16, v{src}")
        for i in range(i0,i0+4):
            if i==0: g.e(f"v_mov_b32 v{V_L}, v{S}")
            else:    g.e(f"v_add_f32 v{V_L}, v{V_L}, v{S+i}")
        for i in range(i0,i0+4): g.e(f"v_mul_f32 v{S+i}, v{S+i}, v{X+i-i0}")
        for i in range(i0,i0+4): g.e(f"v_and_b32 v{X+4+i-i0}, v{V_M1}, v{S+i}")
        for i in range(i0,i0+4): g.e(f"v_sub_f32 v{S+i}, v{S+i}, v{X+4+i-i0}")
        for i in range(i0,i0+4,2): g.e(f"v_perm_b32 v{PA+(i>>1)}, v{S+i+1}, v{S+i}, s{S_PERM}")
    xreduce("v_add_f32", V_L, t)
    g.e(f"v_mfma_f32_16x16x32_bf16 v[{CACC}:{CACC+3}], v[{PA}:{PA+3}], v[{VZ}:{VZ+3}], 0")
    g.e(f"v_mfma_f32_16x16x32_bf16 v[{CACC}:{CACC+3}], v[{PA+4}:{PA+7}], v[{VZ+4}:{VZ+7}], v[{CACC}:{CACC+3}]")
    g.e("s_mov_b64 exec, 15")
    g.e(f"ds_write_b32 v{V_BIAS}, v{V_L} offset:{LDS_Lr}")
    g.e("s_mov_b64 exec, -1")
    if o.early:
        g.e(f"s_cmp_lt_u32 s{S_WAVE}, 4")
        g.e("s_cbranch_scc1 L_nobar1")
        g.e("s_waitcnt lgkmcnt(0)")
        g.e("s_barrier")
        g.e("L_nobar1:")
    g.e(f"v_lshrrev_b32 v{V_T0}, 4, v0")
    g.e(f"v_and_b32 v{V_T1}, 15, v0")
    g.e(f"v_lshlrev_b32 v{V_T0}, 9, v{V_T0}")
    g.e(f"v_lshl_add_u32 v{V_T0}, v{V_T1}, 4, v{V_T0}")
    g.e(f"s_lshl_b32 s{S_T0}, s{S_WAVE}, 11")
    g.e(f"v_add_u32 v{V_T0}, s{S_T0}, v{V_T0}")
    g.c("---- PV ----")
    done_wp = {0:set(),1:set()}
    for ui,(wp,half) in enumerate(units):
        firstacc = len(done_wp[half])==0
        if o.fineV:
            for k in range(4):
                g.wait(("V",wp,half,2*k+1))
                if ui==3 and k==3: stamp(g,o,4)
                for e in range(4): g.e(f"v_cvt_f32_i32 v{X+e}, v{slot_of[('V',wp,half,2*k)]+e}")
                for e in range(4): g.e(f"v_cvt_f32_i32 v{X+4+e}, v{slot_of[('V',wp,half,2*k+1)]+e}")
                for e in range(4): g.e(f"v_cvt_pk_bf16_f32 v{S+4*e+k}, v{X+e}, v{X+4+e}")
            for e in range(4):
                if e==0: g.e("s_nop 0")
                a_=ACC+16*half+4*e
                c = f"v[{CACC}:{CACC+3}]" if firstacc else f"v[{a_}:{a_+3}]"
                g.e(f"v_mfma_f32_16x16x32_bf16 v[{a_}:{a_+3}], v[{PA+4*wp}:{PA+4*wp+3}], v[{S+4*e}:{S+4*e+3}], {c}")
        else:
            g.wait(("V",wp,half,7))
            if ui==3: stamp(g,o,4)
            for e in range(4):
                for s_ in range(8):
                    g.e(f"v_cvt_f32_i32 v{X+s_}, v{slot_of[('V',wp,half,s_)]+e}")
                for k in range(4): g.e(f"v_cvt_pk_bf16_f32 v{R+k}, v{X+2*k}, v{X+2*k+1}")
                g.e("s_nop 1")
                a_=ACC+16*half+4*e
                c = f"v[{CACC}:{CACC+3}]" if firstacc else f"v[{a_}:{a_+3}]"
                g.e(f"v_mfma_f32_16x16x32_bf16 v[{a_}:{a_+3}], v[{PA+4*wp}:{PA+4*wp+3}], v[{R}:{R+3}], {c}")
        done_wp[half].add(wp)
        if len(done_wp[half])==2:
            g.c(f"compaction half {half}")
            g.e("s_nop 7" if not o.fineV else "s_nop 4")
            for e in range(4):
                a_=ACC+16*half+4*e
                g.e(f"v_permlane16_swap_b32 v{a_}, v{a_+1}")
                g.e(f"v_permlane16_swap_b32 v{a_+2}, v{a_+3}")
            for e in range(4):
                a_=ACC+16*half+4*e
                g.e(f"v_add_f32 v{X+e}, v{a_}, v{a_+1}")
                g.e(f"v_add_f32 v{X+4+e}, v{a_+2}, v{a_+3}")
            g.e("s_nop 0")
            for e in range(4):
                g.e(f"v_permlane32_swap_b32 v{X+e}, v{X+4+e}")
            g.e(f"ds_write_b128 v{V_T0}, v[{X}:{X+3}] offset:{LDS_O+256*half}")
            if ui!=3: g.e("s_nop 1")

    if "notail" in o.dbg:
        g.e("s_endpgm")
    def fast_calc():
        if fused and o.fast==1:
            g.e(f"v_readfirstlane_b32 s{S_T0}, v{o.V_RDY}")
            g.e(f"v_readfirstlane_b32 s{S_T1}, v{o.V_RDY+1}")
            g.e(f"s_cmp_ge_u32 s{S_XCC}, 4")
            g.e(f"s_cselect_b32 s{S_T0}, s{S_T1}, s{S_T0}")
            g.e(f"s_and_b32 s{S_T1}, s{S_XCC}, 3")
            g.e(f"s_lshl_b32 s{S_T1}, s{S_T1}, 3")
            g.e(f"s_lshr_b32 s{S_T0}, s{S_T0}, s{S_T1}")
            g.e(f"s_and_b32 s{S_T0}, s{S_T0}, 0xff")
            g.e(f"s_cmp_eq_u32 s{S_T0}, 32")
            g.e(f"s_cselect_b32 s{S_FAST}, 1, 0")
            g.e(f"s_cmp_ge_u32 s{S_XCC}, 8")
            g.e(f"s_cselect_b32 s{S_FAST}, 0, s{S_FAST}")
    def final_barrier():
        g.e("s_waitcnt lgkmcnt(0)")
        g.e("s_barrier")
        stamp(g,o,5)
    if o.early:
        early_tail(g, o, fast_calc, final_barrier)
        return
    g.c("---- tail roles ----")
    nrole = 4 if fused else 3
    if o.presetup:
        g.e(f"s_cmp_ge_u32 s{S_WAVE}, {nrole}")
        g.e("s_cbranch_scc1 L_idle")
        if fused:
            g.e("s_waitcnt vmcnt(0)")
            fast_calc()
    else:
        if fused:
            if o.rdy4: g.e("s_waitcnt vmcnt(0)")
            else: g.wait("rdy")
            fast_calc()
        final_barrier()
        g.e(f"s_cmp_ge_u32 s{S_WAVE}, {nrole}")
        g.e("s_cbranch_scc1 L_idle")
    g.e(f"s_cmp_eq_u32 s{S_WAVE}, 2")
    g.e("s_cbranch_scc1 L_stats")
    if fused:
        g.e(f"s_cmp_eq_u32 s{S_WAVE}, 3")
        g.e("s_cbranch_scc1 L_cons")
    g.e(f"s_lshl_b32 s{S_T0}, s{S_WAVE}, 6")
    g.e(f"v_add_u32 v1, s{S_T0}, v0")
    g.e(f"v_lshrrev_b32 v5, 5, v1")
    g.e(f"v_lshlrev_b32 v5, 5, v5")
    g.e(f"v_lshlrev_b32 v2, 4, v1")
    g.e(f"v_lshrrev_b32 v6, 2, v1")
    g.e(f"v_and_b32 v4, 3, v1")
    g.e(f"v_lshlrev_b32 v6, {11 if o.compact else 12}, v6")
    g.e(f"v_lshl_add_u32 v4, v4, 4, v6")
    if o.presetup: final_barrier()
    g.e(f"ds_read_b128 v[8:11], v5 offset:{LDS_M}")
    g.e(f"ds_read_b128 v[12:15], v5 offset:{LDS_M+16}")
    for w in range(8):
        g.e(f"ds_read_b128 v[{16+4*w}:{19+4*w}], v2 offset:{LDS_O+2048*w}")
    g.e("s_waitcnt lgkmcnt(8)")
    g.e("v_max3_f32 v6, v8, v9, v10"); g.e("v_max3_f32 v7, v11, v12, v13"); g.e("v_max3_f32 v6, v6, v14, v15"); g.e("v_max_f32 v6, v6, v7")
    g.e(f"v_mul_f32 v6, s{S_C}, v6")
    for w in range(8): g.e(f"v_fma_f32 v{8+w}, v{8+w}, s{S_C}, -v6")
    for w in range(8): g.e(f"v_exp_f32 v{8+w}, v{8+w}")
    g.e("s_waitcnt lgkmcnt(7)")
    for e in range(4): g.e(f"v_mul_f32 v{16+e}, v{16+e}, v8")
    for w in range(1,8):
        g.e(f"s_waitcnt lgkmcnt({7-w})")
        for e in range(4): g.e(f"v_fmac_f32 v{16+e}, v{16+4*w+e}, v{8+w}")
    for e in range(4): g.e(f"v_min_u32 v{16+e}, -2, v{16+e}")
    publish(g,o,16,4,4,SRD_W,0,"L_po")
    stamp(g,o,6)
    if o.stamps: g.e("s_waitcnt vmcnt(0)")
    stamp(g,o,7); stamp_store(g,o)
    g.e("s_endpgm")
    g.e("L_stats:")
    if o.compact:
        g.e(f"v_and_b32 v1, 3, v0")
        g.e(f"v_lshlrev_b32 v4, 8, v1")
    else:
        g.e(f"v_lshrrev_b32 v1, 3, v0")
        g.e(f"v_and_b32 v1, 3, v1")
        g.e(f"v_lshlrev_b32 v4, 12, v0")
    g.e(f"v_lshlrev_b32 v2, 5, v1")
    g.e(f"v_lshlrev_b32 v3, {4 if o.shared else 2}, v1")
    if o.presetup: final_barrier()
    g.e(f"ds_read_b128 v[24:27], v2 offset:{LDS_M}")
    g.e(f"ds_read_b128 v[28:31], v2 offset:{LDS_M+16}")
    g.e(f"ds_read_b128 v[16:19], v2 offset:{LDS_Lr}")
    g.e(f"ds_read_b128 v[20:23], v2 offset:{LDS_Lr+16}")
    if o.shared: g.e(f"ds_read_b128 v[32:35], v3 offset:{LDS_B}")
    else: g.e(f"ds_read_b32 v32, v3 offset:{LDS_B}")
    g.e("s_waitcnt lgkmcnt(3)")
    g.e("v_max3_f32 v6, v24, v25, v26"); g.e("v_max3_f32 v7, v27, v28, v29"); g.e("v_max3_f32 v6, v6, v30, v31"); g.e("v_max_f32 v6, v6, v7")
    g.e(f"v_mul_f32 v7, s{S_C}, v6")
    for w in range(8): g.e(f"v_fma_f32 v{24+w}, v{24+w}, s{S_C}, -v7")
    for w in range(8): g.e(f"v_exp_f32 v{24+w}, v{24+w}")
    g.e("s_waitcnt lgkmcnt(0)")
    if o.shared:
        g.e("v_add_f32 v32, v32, v33"); g.e("v_add_f32 v34, v34, v35"); g.e("v_add_f32 v32, v32, v34")
    g.e("v_sub_f32 v6, v6, v32")
    g.e("v_mul_f32 v16, v16, v24")
    g.e("v_mul_f32 v18, v18, v26")
    g.e("v_fmac_f32 v16, v17, v25")
    g.e("v_fmac_f32 v18, v19, v27")
    g.e("v_fmac_f32 v16, v20, v28")
    g.e("v_fmac_f32 v18, v21, v29")
    g.e("v_fmac_f32 v16, v22, v30")
    g.e("v_fmac_f32 v18, v23, v31")
    g.e(f"v_mul_f32 v17, s{S_C}, v6")
    g.e("v_add_f32 v16, v16, v18")
    g.e("v_min_u32 v17, -2, v17")
    g.e("v_min_u32 v16, -2, v16")
    if o.compact:
        g.e("s_mov_b64 exec, 15")
        publish(g,o,16,2,4,SRD_T,0,"L_ps")
    else:
        g.e("v_mov_b32 v18, 0"); g.e("v_mov_b32 v19, 0")
        g.e("s_mov_b32 exec_hi, 0")
        publish(g,o,16,4,4,SRD_W,64,"L_ps")
    stamp(g,o,6); stamp(g,o,7); stamp_store(g,o)
    g.e("s_endpgm")
    if fused:
        g.e("L_cons:")
        consumer_setup(g,o)
        consumer(g, True, "L_c", o, final_barrier if o.presetup else None)
        if o.stamps: g.e("s_waitcnt vmcnt(0)")
        stamp(g,o,7); stamp_store(g,o)
        g.e("s_endpgm")
    g.e("L_idle:")
    if o.presetup: final_barrier()
    stamp(g,o,6); stamp(g,o,7); stamp_store(g,o)
    g.e("L_end:")
    g.e("s_endpgm")

def combine_kernel(g, o):
    kernel_begin(g, o.comb_name)
    g.e("s_cmp_ge_u32 s2, 256")
    g.e("s_cbranch_scc1 L2_end")
    g.e(f"s_load_dwordx2 s[{S_OUT}:{S_OUT+1}], s[0:1], 56")
    g.e(f"s_load_dwordx2 s[{S_WS}:{S_WS+1}], s[0:1], 72")
    g.e("s_waitcnt lgkmcnt(0)")
    consumer_setup(g,o)
    st=o.stamps; o.stamps=0
    consumer(g, False, "L2_c", o)
    o.stamps=st
    g.e("L2_end:")
    g.e("s_endpgm")

def strip_compute(L):
    out=[]; on=False
    for l in L:
        if l.startswith("; ---- q' ----") or l.startswith("; ---- QK ----"): on=True
        if l.startswith("; ---- tail roles"): on=False
        if on and (l.startswith("v_") or l.startswith("ds_") or l.startswith("s_nop")): continue
        out.append(l)
    return out

def build(o):
    g = G()
    o.lds = LDS_SIZE1 if o.shared else LDS_SIZE0
    g.L.append(HEADER.rstrip("\n"))
    if o.fused:
        o.main_name = KN
        g.e(f"; @launch grid=(256,1,1) block=(512,1,1) lds={o.lds}")
    else:
        o.main_name = "kvdec_main_kernel"
        o.comb_name = "kvdec_combine_kernel"
        g.e(f"; @launch kernel={o.main_name} grid=(256,1,1) block=(512,1,1) lds={o.lds}")
        g.e(f"; @launch kernel={o.comb_name} grid=(256,1,1) block=(64,1,1) lds=0")
    g.e('.amdgcn_target "amdgcn-amd-amdhsa--gfx950"')
    g.e(".text")
    main_kernel(g, o)
    if not o.fused: combine_kernel(g, o)
    g.e('.section .rodata,"a"')
    kernel_desc(g, o.main_name, RING + 4*o.nslots)
    if not o.fused: kernel_desc(g, o.comb_name, 40)
    if "nocomp" in o.dbg: g.L = strip_compute(g.L)
    return "\n".join(g.L) + "\n"

def parse(argv):
    ap = argparse.ArgumentParser()
    ap.add_argument("out")
    ap.add_argument("--fused", type=int, default=1)
    ap.add_argument("--nslots", type=int, default=38)
    ap.add_argument("--ld", default="nt")
    ap.add_argument("--stamps", type=int, default=0)
    ap.add_argument("--xmap", type=int, default=0)
    ap.add_argument("--bar0", type=int, default=1)
    ap.add_argument("--korder", default="ju")
    ap.add_argument("--vunits", default="w")
    ap.add_argument("--kfirst", type=int, default=0)
    ap.add_argument("--clearpos", default="first")
    ap.add_argument("--tlbw", type=int, default=0)
    ap.add_argument("--fast", type=int, default=0)
    ap.add_argument("--outfl", default="")
    ap.add_argument("--vsearly", type=int, default=0)
    ap.add_argument("--rdy4", type=int, default=0)
    ap.add_argument("--compact", type=int, default=0)
    ap.add_argument("--presetup", type=int, default=0)
    ap.add_argument("--clearwave", type=int, default=0)
    ap.add_argument("--kpre", type=int, default=0)
    ap.add_argument("--fineV", type=int, default=0)
    ap.add_argument("--shared", type=int, default=0)
    ap.add_argument("--dbg", default="")
    ap.add_argument("--early", type=int, default=0)
    ap.add_argument("--inbox", type=int, default=0)
    o = ap.parse_args(argv)
    o.ldflags = o.ld
    o.V_RDY = None
    return o

if __name__ == "__main__":
    o = parse(sys.argv[1:])
    open(o.out, "w").write(build(o))
```

```python
import sys, argparse, struct

KN = "standalone__kv_cache_quant_int4_int2_kv_with_per_channel_or_per_token_scales__decode_kernel"
HEADER = """; Kernarg layout (80 bytes, ptrs only, base s[0:1]):
;   24: k_scales (1,8,2,128) bf16 | 32: k_zeros | 40: v_scales (1,8,16384,1) bf16 | 48: v_zeros
"""

DOC = """
Decode attention over an int32-stored quantized KV cache (GQA 32 q heads / 8 kv heads, 16384 tokens, d = 128).
One workgroup (8 waves) per CU = (kv head, 512 tokens); one wave = 64 tokens.  The kernel streams 128 MiB once.
  scores : q' = q * k_scale is an exact 16-bit product, split in bf16 hi + lo (MFMA columns = rep x head);
           S = K_int . q'  (K ints -> f32 -> bf16, MFMA 16x16x32); the k_zero term q'.k_zero is one constant
           per (head, group) and is folded into the published maximum.
  softmax: true maximum per wave, rescaled with the true maxima across waves and workgroups.
  values : P' = p * v_scale (bf16 hi + lo rows), O = P' . V_int - P' . v_zero (MFMA; the zero term seeds the
           accumulators).
  loads  : K rows as 8 x 128 B segments (lane pairs 8 apart exchanged by DPP during the conversion), V rows as
           4 x 256 B segments (the transposition is free: the bf16 packing picks the registers).
  combine: every workgroup publishes 32 records (16 outputs each) + (sum, max) per head in d_ws; wave 3 of
           workgroup j polls the 32 records of slice j and writes 16 outputs.  Records are first overwritten with
           a sentinel (all ones, never published) and counted in d_debug, one byte counter per XCD: a consumer
           reads only after all 32 counts are in.  Records are stored write-through, or plainly (same L2) when
           the counters show that the whole kv head runs on this XCD.
"""

class G:
    def __init__(self):
        self.L = []
        self.vm = []
    def e(self, s): self.L.append(s)
    def c(self, s): self.L.append("; " + s)
    def vmem(self, s, tag):
        self.L.append(s); self.vm.append(tag)
    def wait(self, tag):
        if tag not in self.vm: return False
        idx = len(self.vm) - 1 - self.vm[::-1].index(tag)
        n = len(self.vm) - 1 - idx
        assert n <= 63
        self.e(f"s_waitcnt vmcnt({n})")
        self.vm = self.vm[idx + 1:]
        return True

V_LANE=0; V_K=1; V_V=2; V_T0=3; V_T1=4; V_M1=5; V_BIAS=6; V_L=7
QP=8
S=24
ACC=40
VS=72; VZ=80
X=88
R=96
CACC=100
RING=104
S_WAVE=3
S_Q=4; S_QK=6; S_QV=8; S_KS=10; S_KZ=12; S_VS=14; S_VZ=16; S_OUT=18; S_DBG=20; S_WS=22
SRD_K=24; SRD_V=28; SRD_A=32; SRD_B=36; SRD_C=40; SRD_VS=44; SRD_VZ=48; SRD_W=52; SRD_O=56; SRD_D=60; SRD_T=96
S_HI=64; S_C=65; S_PERM=66; S_8192=67; S_16384=68; S_24576=69; S_T0=70; S_T1=71; S_T2=72; S_HK=73; S_SPLIT=74; S_NEG=75
S_XCC=76; S_FAST=77; S_XS=78; S_XT=79
S_ST=80
CEXP = 0.08838834764831845 * 1.4426950408889634
def f2u(x): return struct.unpack("<I", struct.pack("<f", x))[0]

STATS_OFF=0x100000
LDS_M=0
LDS_Lr=128
LDS_B=256
LDS_O=512
LDS_Q=512+8*2048
LDS_VS=LDS_Q+4096
LDS_VZ=LDS_VS+1024
LDS_SIZE0=512+8*2048
LDS_SIZE1=LDS_VZ+1024

def srd(g, dst, base, off_sreg, size):
    if off_sreg is None:
        g.e(f"s_mov_b32 s{dst}, s{base}"); g.e(f"s_mov_b32 s{dst+1}, s{base+1}")
    else:
        g.e(f"s_add_u32 s{dst}, s{base}, s{off_sreg}"); g.e(f"s_addc_u32 s{dst+1}, s{base+1}, 0")
    g.e(f"s_mov_b32 s{dst+2}, {size}")
    g.e(f"s_mov_b32 s{dst+3}, 0x20000")

def kernel_begin(g, name):
    g.e(f".globl {name}"); g.e(".p2align 8"); g.e(f".type {name},@function"); g.e(f"{name}:")

def kernel_desc(g, name, nv, ns=100):
    nv8 = (nv + 7) // 8 * 8
    g.e(".p2align 6")
    g.e(f".amdhsa_kernel {name}")
    g.e(f"  .amdhsa_next_free_vgpr {nv8}")
    g.e(f"  .amdhsa_next_free_sgpr {ns}")
    g.e(f"  .amdhsa_accum_offset {min(256,(nv+3)//4*4)}")
    g.e("  .amdhsa_group_segment_fixed_size 0")
    g.e("  .amdhsa_kernarg_size 80")
    g.e("  .amdhsa_user_sgpr_count 2")
    g.e("  .amdhsa_user_sgpr_kernarg_segment_ptr 1")
    g.e("  .amdhsa_system_sgpr_workgroup_id_x 1")
    g.e(".end_amdhsa_kernel")

def stamp(g, o, k):
    if o.stamps==1 or (o.stamps==2 and k in (0,5,6,7)): g.e(f"s_memrealtime s[{S_ST+2*k}:{S_ST+2*k+1}]")
def stamp2(g, o, k):
    if o.stamps==2: g.e(f"s_memrealtime s[{S_ST+2*k}:{S_ST+2*k+1}]")
def stamp_store(g, o):
    if not o.stamps: return
    g.e("s_waitcnt lgkmcnt(0)")
    g.e(f"s_lshl_b32 s{S_T0}, s2, 3")
    g.e(f"s_add_u32 s{S_T0}, s{S_T0}, s{S_WAVE}")
    g.e(f"s_lshl_b32 s{S_T0}, s{S_T0}, 5")
    g.e(f"s_add_u32 s{S_T0}, s{S_T0}, 0x400000")
    srd(g, SRD_A, S_WS, S_T0, 32)
    g.e("s_mov_b64 exec, 1")
    for k in range(8): g.e(f"v_mov_b32 v{40+k}, s{S_ST+2*k}")
    g.e("v_mov_b32 v48, 0")
    g.e(f"buffer_store_dwordx4 v[40:43], v48, s[{SRD_A}:{SRD_A+3}], 0 offen")
    g.e(f"buffer_store_dwordx4 v[44:47], v48, s[{SRD_A}:{SRD_A+3}], 0 offen offset:16")
    g.e("s_waitcnt vmcnt(0)")

def consumer_setup(g, o):
    if o.compact:
        g.e(f"s_lshl_b32 s{S_T0}, s2, 11")
        srd(g, SRD_W, S_WS, S_T0, 2048)
        g.e(f"s_lshr_b32 s{S_T0}, s2, 3")
        g.e(f"s_lshl_b32 s{S_T0}, s{S_T0}, 8")
        g.e(f"s_add_u32 s{S_T0}, s{S_T0}, {STATS_OFF}")
        srd(g, SRD_T, S_WS, S_T0, 256)
    else:
        g.e(f"s_lshl_b32 s{S_T0}, s2, 12")
        srd(g, SRD_W, S_WS, S_T0, 4096)
    g.e(f"s_lshl_b32 s{S_T0}, s2, 5")
    srd(g, SRD_O, S_OUT, S_T0, 32)
    g.e(f"v_lshrrev_b32 v8, 2, v{V_LANE}")
    g.e(f"v_and_b32 v9, 3, v{V_LANE}")
    if o.compact:
        g.e(f"v_lshlrev_b32 v10, 3, v8")
        g.e(f"v_lshlrev_b32 v11, 4, v{V_LANE}")
    else:
        g.e(f"v_lshlrev_b32 v10, 7, v8")
        g.e(f"v_lshl_add_u32 v11, v9, 4, v10")
    g.e(f"v_lshrrev_b32 v12, 4, v{V_LANE}")
    g.e(f"v_and_b32 v13, 1, v12")
    g.e(f"v_lshrrev_b32 v12, 1, v12")
    g.e(f"v_lshl_or_b32 v12, v13, 1, v12")
    g.e(f"v_lshl_add_u32 v12, v9, 2, v12")
    g.e(f"v_lshlrev_b32 v12, 1, v12")
    if o.outwarm and o.fused:
        g.e(f"buffer_load_ushort v14, v12, s[{SRD_O}:{SRD_O+3}], 0 offen")

def ready_total(g, src, dst):
    g.e(f"v_sad_u8 v{dst}, v{src}, 0, 0")
    g.e(f"v_sad_u8 v{dst}, v{src+1}, 0, v{dst}")
    g.e(f"v_sad_u8 v{dst}, v{src+2}, 0, v{dst}")

def consumer(g, fused, pfx, o, barrier=None):
    A=16; B=20; T0=24; T1=26; t=30
    g.c("---- combine 32 records, store 16 outputs ----")
    if fused:
        RD=o.V_RDY
        g.e(f"s_mov_b32 s{S_T2}, 0x40000")
        g.e(f"s_waitcnt vmcnt(0)")
        g.e(f"{pfx}_rdy:")
        ready_total(g, RD, 13)
        g.e(f"v_cmp_gt_u32 vcc, 32, v13")
        g.e(f"s_cbranch_vccz {pfx}_rdyok" if barrier else f"s_cbranch_vccz {pfx}_poll")
        g.e(f"s_sub_u32 s{S_T2}, s{S_T2}, 1")
        g.e(f"s_cbranch_scc1 {pfx}_rdyok" if barrier else f"s_cbranch_scc1 {pfx}_go")
        g.e(f"buffer_load_dwordx3 v[{RD}:{RD+2}], off, s[{SRD_D}:{SRD_D+3}], 0 sc1")
        g.e(f"s_waitcnt vmcnt(0)")
        g.e(f"s_branch {pfx}_rdy")
        if barrier:
            g.e(f"{pfx}_rdyok:")
            barrier()
    g.e(f"{pfx}_poll:")
    fl = "sc1" if fused else ""
    if o.compact:
        g.e(f"buffer_load_dwordx2 v[{T0}:{T0+1}], v10, s[{SRD_T}:{SRD_T+3}], 0 offen {fl}")
        g.e(f"buffer_load_dwordx2 v[{T1}:{T1+1}], v10, s[{SRD_T}:{SRD_T+3}], 0 offen offset:128 {fl}")
        g.e(f"buffer_load_dwordx4 v[{A}:{A+3}], v11, s[{SRD_W}:{SRD_W+3}], 0 offen {fl}")
        g.e(f"buffer_load_dwordx4 v[{B}:{B+3}], v11, s[{SRD_W}:{SRD_W+3}], 0 offen offset:1024 {fl}")
    else:
        g.e(f"buffer_load_dwordx4 v[{A}:{A+3}], v11, s[{SRD_W}:{SRD_W+3}], 0 offen {fl}")
        g.e(f"buffer_load_dwordx4 v[{B}:{B+3}], v11, s[{SRD_W}:{SRD_W+3}], 0 offen offset:2048 {fl}")
        g.e(f"buffer_load_dwordx2 v[{T0}:{T0+1}], v10, s[{SRD_W}:{SRD_W+3}], 0 offen offset:64 {fl}")
        g.e(f"buffer_load_dwordx2 v[{T1}:{T1+1}], v10, s[{SRD_W}:{SRD_W+3}], 0 offen offset:2112 {fl}")
    g.e("s_waitcnt vmcnt(0)")
    if fused:
        g.e(f"v_max3_u32 v{t}, v{A}, v{A+1}, v{A+2}")
        g.e(f"v_max3_u32 v{t+1}, v{A+3}, v{B}, v{B+1}")
        g.e(f"v_max3_u32 v{t}, v{t}, v{B+2}, v{B+3}")
        g.e(f"v_max3_u32 v{t+1}, v{t+1}, v{T0}, v{T0+1}")
        g.e(f"v_max3_u32 v{t}, v{t}, v{T1}, v{T1+1}")
        g.e(f"v_max_u32 v{t}, v{t}, v{t+1}")
        g.e(f"v_cmp_eq_u32 vcc, -1, v{t}")
        g.e(f"s_cbranch_vccz {pfx}_go")
        g.e(f"s_sub_u32 s{S_T2}, s{S_T2}, 1")
        g.e(f"s_cbranch_scc0 {pfx}_poll")
        g.e(f"{pfx}_go:")
        stamp(g,o,6)
    g.e(f"v_max_f32 v{t}, v{T0+1}, v{T1+1}")
    g.e("s_nop 1")
    g.e(f"v_max_f32_dpp v{t}, v{t}, v{t} row_ror:4 row_mask:0xf bank_mask:0xf")
    g.e("s_nop 1")
    g.e(f"v_max_f32_dpp v{t}, v{t}, v{t} row_ror:8 row_mask:0xf bank_mask:0xf")
    g.e(f"s_nop 0")
    g.e(f"v_mov_b32 v{t+1}, v{t}")
    g.e("s_nop 1")
    g.e(f"v_permlane16_swap_b32 v{t+1}, v{t}")
    g.e(f"v_max_f32 v{t}, v{t}, v{t+1}")
    g.e(f"v_mov_b32 v{t+1}, v{t}")
    g.e("s_nop 1")
    g.e(f"v_permlane32_swap_b32 v{t+1}, v{t}")
    g.e(f"v_max_f32 v{t}, v{t}, v{t+1}")
    g.e(f"v_sub_f32 v{T0+1}, v{T0+1}, v{t}")
    g.e(f"v_sub_f32 v{T1+1}, v{T1+1}, v{t}")
    g.e(f"v_exp_f32 v{T0+1}, v{T0+1}")
    g.e(f"v_exp_f32 v{T1+1}, v{T1+1}")
    g.e("s_nop 0")
    g.e(f"v_mul_f32 v{T0}, v{T0}, v{T0+1}")
    for e in range(4): g.e(f"v_mul_f32 v{A+e}, v{A+e}, v{T0+1}")
    g.e(f"v_fmac_f32 v{T0}, v{T1}, v{T1+1}")
    for e in range(4): g.e(f"v_fmac_f32 v{A+e}, v{B+e}, v{T1+1}")
    g.e(f"v_add_f32_dpp v{T0}, v{T0}, v{T0} row_ror:4 row_mask:0xf bank_mask:0xf")
    g.e("s_nop 0")
    g.e(f"v_permlane32_swap_b32 v{A}, v{A+1}")
    g.e(f"v_permlane32_swap_b32 v{A+2}, v{A+3}")
    g.e(f"v_add_f32_dpp v{T0}, v{T0}, v{T0} row_ror:8 row_mask:0xf bank_mask:0xf")
    g.e(f"v_add_f32 v{A}, v{A}, v{A+1}")
    g.e(f"v_add_f32 v{A+2}, v{A+2}, v{A+3}")
    g.e(f"v_mov_b32 v{t}, v{T0}")
    g.e("s_nop 1")
    g.e(f"v_permlane16_swap_b32 v{A}, v{A+2}")
    g.e(f"v_permlane16_swap_b32 v{t}, v{T0}")
    g.e(f"v_add_f32 v{A}, v{A}, v{A+2}")
    g.e(f"v_add_f32 v{T0}, v{T0}, v{t}")
    g.e("s_nop 0")
    g.e(f"v_mov_b32 v{t}, v{T0}")
    g.e(f"v_add_f32_dpp v{A}, v{A}, v{A} row_ror:4 row_mask:0xf bank_mask:0xf")
    g.e("s_nop 0")
    g.e(f"v_permlane32_swap_b32 v{t}, v{T0}")
    g.e(f"v_add_f32_dpp v{A}, v{A}, v{A} row_ror:8 row_mask:0xf bank_mask:0xf")
    g.e(f"v_add_f32 v{T0}, v{T0}, v{t}")
    g.e(f"v_rcp_f32 v{T0}, v{T0}")
    g.e("s_nop 0")
    g.e(f"v_mul_f32 v{A}, v{A}, v{T0}")
    g.e(f"v_cvt_pk_bf16_f32 v{A}, v{A}, v{A}")
    g.e(f"s_mov_b32 exec_lo, 0x000f000f")
    g.e(f"s_mov_b32 exec_hi, 0x000f000f")
    g.e(f"buffer_store_short v{A}, v12, s[{SRD_O}:{SRD_O+3}], 0 offen {o.outfl}")

def publish(g, o, data, n, addr, srd_, off, lbl):
    ins = f"buffer_store_dwordx{n} v[{data}:{data+n-1}], v{addr}, s[{srd_}:{srd_+3}], 0 offen offset:{off}"
    if o.fused and o.fast==1:
        g.e(f"s_cmp_eq_u32 s{S_FAST}, 1")
        g.e(f"s_cbranch_scc1 {lbl}_f")
        g.e(ins+" sc1")
        g.e(f"s_branch {lbl}_d")
        g.e(f"{lbl}_f:")
        g.e(ins)
        g.e(f"{lbl}_d:")
    elif o.fast==2:
        g.e(ins)
    else:
        g.e(ins+" sc1")

def ready_spin(g, o, pfx, tmp):
    RD=o.V_RDY
    g.e(f"s_mov_b32 s{S_T2}, 0x40000")
    g.e(f"{pfx}_rdy:")
    ready_total(g, RD, tmp)
    g.e(f"v_cmp_gt_u32 vcc, 32, v{tmp}")
    g.e(f"s_cbranch_vccz {pfx}_rdyok")
    g.e(f"s_sub_u32 s{S_T2}, s{S_T2}, 1")
    g.e(f"s_cbranch_scc1 {pfx}_rdyok")
    g.e(f"buffer_load_dwordx3 v[{RD}:{RD+2}], off, s[{SRD_D}:{SRD_D+3}], 0 sc1")
    g.e(f"s_waitcnt vmcnt(0)")
    g.e(f"s_branch {pfx}_rdy")
    g.e(f"{pfx}_rdyok:")

def early_tail(g, o, fast_calc, final_barrier):
    assert o.fused and o.compact
    g.c("---- tail roles ----")
    g.e(f"s_cmp_ge_u32 s{S_WAVE}, 4")
    g.e("s_cbranch_scc1 L_idle")
    g.e("s_waitcnt vmcnt(0) lgkmcnt(0)")
    g.e("s_barrier")
    ready_spin(g, o, "L_e", 13)
    fast_calc()
    g.e(f"s_cmp_eq_u32 s{S_WAVE}, 2")
    g.e("s_cbranch_scc1 L_stats")
    g.e(f"s_cmp_eq_u32 s{S_WAVE}, 3")
    g.e("s_cbranch_scc1 L_cons")
    g.e(f"s_lshl_b32 s{S_T0}, s{S_WAVE}, 6")
    g.e(f"v_add_u32 v1, s{S_T0}, v0")
    g.e(f"v_lshrrev_b32 v5, 5, v1")
    g.e(f"v_lshlrev_b32 v5, 5, v5")
    g.e(f"v_lshlrev_b32 v2, 4, v1")
    g.e(f"ds_read_b128 v[8:11], v5 offset:{LDS_M}")
    g.e(f"ds_read_b128 v[12:15], v5 offset:{LDS_M+16}")
    for w in range(4):
        g.e(f"ds_read_b128 v[{16+4*w}:{19+4*w}], v2 offset:{LDS_O+2048*w}")
    g.e(f"v_lshrrev_b32 v6, 2, v1")
    g.e(f"v_and_b32 v4, 3, v1")
    g.e(f"v_lshlrev_b32 v6, 11, v6")
    g.e(f"v_lshl_add_u32 v4, v4, 4, v6")
    g.e("s_waitcnt lgkmcnt(4)")
    g.e("v_max3_f32 v6, v8, v9, v10"); g.e("v_max3_f32 v7, v11, v12, v13"); g.e("v_max3_f32 v6, v6, v14, v15"); g.e("v_max_f32 v6, v6, v7")
    g.e(f"v_mul_f32 v6, s{S_C}, v6")
    for w in range(8): g.e(f"v_fma_f32 v{8+w}, v{8+w}, s{S_C}, -v6")
    for w in range(8): g.e(f"v_exp_f32 v{8+w}, v{8+w}")
    g.e("s_waitcnt lgkmcnt(0)")
    for e in range(4): g.e(f"v_mul_f32 v{16+e}, v{16+e}, v8")
    for w in range(1,4):
        for e in range(4): g.e(f"v_fmac_f32 v{16+e}, v{16+4*w+e}, v{8+w}")
    final_barrier()
    for w in range(4,8):
        g.e(f"ds_read_b128 v[{16+4*(w-3)}:{19+4*(w-3)}], v2 offset:{LDS_O+2048*w}")
    for w in range(4,8):
        g.e(f"s_waitcnt lgkmcnt({7-w})")
        for e in range(4): g.e(f"v_fmac_f32 v{16+e}, v{16+4*(w-3)+e}, v{8+w}")
    for e in range(4): g.e(f"v_min_u32 v{16+e}, -2, v{16+e}")
    publish(g,o,16,4,4,SRD_W,0,"L_po")
    stamp(g,o,6)
    if o.stamps: g.e("s_waitcnt vmcnt(0)")
    stamp(g,o,7); stamp_store(g,o)
    g.e("s_endpgm")
    g.e("L_stats:")
    g.e(f"v_and_b32 v1, 3, v0")
    g.e(f"v_lshlrev_b32 v4, 8, v1")
    g.e(f"v_lshlrev_b32 v2, 5, v1")
    g.e(f"v_lshlrev_b32 v3, {4 if o.shared else 2}, v1")
    g.e(f"ds_read_b128 v[24:27], v2 offset:{LDS_M}")
    g.e(f"ds_read_b128 v[28:31], v2 offset:{LDS_M+16}")
    g.e(f"ds_read_b128 v[16:19], v2 offset:{LDS_Lr}")
    g.e(f"ds_read_b128 v[20:23], v2 offset:{LDS_Lr+16}")
    if o.shared: g.e(f"ds_read_b128 v[32:35], v3 offset:{LDS_B}")
    else: g.e(f"ds_read_b32 v32, v3 offset:{LDS_B}")
    g.e("s_waitcnt lgkmcnt(3)")
    g.e("v_max3_f32 v6, v24, v25, v26"); g.e("v_max3_f32 v7, v27, v28, v29"); g.e("v_max3_f32 v6, v6, v30, v31"); g.e("v_max_f32 v6, v6, v7")
    g.e(f"v_mul_f32 v7, s{S_C}, v6")
    for w in range(8): g.e(f"v_fma_f32 v{24+w}, v{24+w}, s{S_C}, -v7")
    for w in range(8): g.e(f"v_exp_f32 v{24+w}, v{24+w}")
    g.e("s_waitcnt lgkmcnt(0)")
    if o.shared:
        g.e("v_add_f32 v32, v32, v33"); g.e("v_add_f32 v34, v34, v35"); g.e("v_add_f32 v32, v32, v34")
    g.e("v_sub_f32 v6, v6, v32")
    g.e("v_mul_f32 v16, v16, v24"); g.e("v_mul_f32 v18, v18, v26")
    g.e("v_fmac_f32 v16, v17, v25"); g.e("v_fmac_f32 v18, v19, v27")
    g.e("v_fmac_f32 v16, v20, v28"); g.e("v_fmac_f32 v18, v21, v29")
    g.e("v_fmac_f32 v16, v22, v30"); g.e("v_fmac_f32 v18, v23, v31")
    g.e(f"v_mul_f32 v17, s{S_C}, v6")
    g.e("v_add_f32 v16, v16, v18")
    g.e("v_min_u32 v17, -2, v17")
    g.e("v_min_u32 v16, -2, v16")
    g.e("s_mov_b64 exec, 15")
    publish(g,o,16,2,4,SRD_T,0,"L_ps")
    g.e("s_mov_b64 exec, -1")
    final_barrier()
    stamp(g,o,6); stamp(g,o,7); stamp_store(g,o)
    g.e("s_endpgm")
    g.e("L_cons:")
    consumer_setup(g,o)
    A=16; B=20; T0=24; T1=26; t=30
    if o.early==2: final_barrier()
    g.c("---- stage 1: maxima and sums of the 32 workgroups ----")
    g.e(f"s_mov_b32 s{S_T2}, 0x40000")
    g.e("L_c1:")
    g.e(f"buffer_load_dwordx2 v[{T0}:{T0+1}], v10, s[{SRD_T}:{SRD_T+3}], 0 offen sc1")
    g.e(f"buffer_load_dwordx2 v[{T1}:{T1+1}], v10, s[{SRD_T}:{SRD_T+3}], 0 offen offset:128 sc1")
    g.e("s_waitcnt vmcnt(0)")
    g.e(f"v_max3_u32 v{t}, v{T0}, v{T0+1}, v{T1}")
    g.e(f"v_max_u32 v{t}, v{t}, v{T1+1}")
    g.e(f"v_cmp_eq_u32 vcc, -1, v{t}")
    g.e("s_cbranch_vccz L_c1ok")
    g.e(f"s_sub_u32 s{S_T2}, s{S_T2}, 1")
    g.e("s_cbranch_scc0 L_c1")
    g.e("L_c1ok:")
    g.e(f"v_max_f32 v{t}, v{T0+1}, v{T1+1}")
    g.e("s_nop 1")
    g.e(f"v_max_f32_dpp v{t}, v{t}, v{t} row_ror:4 row_mask:0xf bank_mask:0xf")
    g.e("s_nop 1")
    g.e(f"v_max_f32_dpp v{t}, v{t}, v{t} row_ror:8 row_mask:0xf bank_mask:0xf")
    g.e(f"s_nop 0")
    g.e(f"v_mov_b32 v{t+1}, v{t}")
    g.e("s_nop 1")
    g.e(f"v_permlane16_swap_b32 v{t+1}, v{t}")
    g.e(f"v_max_f32 v{t}, v{t}, v{t+1}")
    g.e(f"v_mov_b32 v{t+1}, v{t}")
    g.e("s_nop 1")
    g.e(f"v_permlane32_swap_b32 v{t+1}, v{t}")
    g.e(f"v_max_f32 v{t}, v{t}, v{t+1}")
    g.e(f"v_sub_f32 v{T0+1}, v{T0+1}, v{t}")
    g.e(f"v_sub_f32 v{T1+1}, v{T1+1}, v{t}")
    g.e(f"v_exp_f32 v{T0+1}, v{T0+1}")
    g.e(f"v_exp_f32 v{T1+1}, v{T1+1}")
    g.e("s_nop 0")
    g.e(f"v_mul_f32 v{T0}, v{T0}, v{T0+1}")
    g.e(f"v_fmac_f32 v{T0}, v{T1}, v{T1+1}")
    g.e("s_nop 1")
    g.e(f"v_add_f32_dpp v{T0}, v{T0}, v{T0} row_ror:4 row_mask:0xf bank_mask:0xf")
    g.e("s_nop 1")
    g.e(f"v_add_f32_dpp v{T0}, v{T0}, v{T0} row_ror:8 row_mask:0xf bank_mask:0xf")
    g.e(f"s_nop 0")
    g.e(f"v_mov_b32 v{t}, v{T0}")
    g.e("s_nop 1")
    g.e(f"v_permlane16_swap_b32 v{t}, v{T0}")
    g.e(f"v_add_f32 v{T0}, v{T0}, v{t}")
    g.e(f"v_mov_b32 v{t}, v{T0}")
    g.e("s_nop 1")
    g.e(f"v_permlane32_swap_b32 v{t}, v{T0}")
    g.e(f"v_add_f32 v{T0}, v{T0}, v{t}")
    g.e(f"v_rcp_f32 v{T0}, v{T0}")
    g.e("s_nop 0")
    g.e(f"v_mul_f32 v{T0+1}, v{T0+1}, v{T0}")
    g.e(f"v_mul_f32 v{T1+1}, v{T1+1}, v{T0}")
    g.e(f"s_mov_b32 s{S_T2}, 0x40000")
    if o.early==1: final_barrier()
    g.c("---- stage 2: the 32 partial outputs ----")
    g.e("L_c2:")
    g.e(f"buffer_load_dwordx4 v[{A}:{A+3}], v11, s[{SRD_W}:{SRD_W+3}], 0 offen sc1")
    g.e(f"buffer_load_dwordx4 v[{B}:{B+3}], v11, s[{SRD_W}:{SRD_W+3}], 0 offen offset:1024 sc1")
    g.e("s_waitcnt vmcnt(0)")
    g.e(f"v_max3_u32 v{t}, v{A}, v{A+1}, v{A+2}")
    g.e(f"v_max3_u32 v{t+1}, v{B}, v{B+1}, v{B+2}")
    g.e(f"v_max3_u32 v{t}, v{t}, v{A+3}, v{B+3}")
    g.e(f"v_max_u32 v{t}, v{t}, v{t+1}")
    g.e(f"v_cmp_eq_u32 vcc, -1, v{t}")
    g.e("s_cbranch_vccz L_c2ok")
    g.e(f"s_sub_u32 s{S_T2}, s{S_T2}, 1")
    g.e("s_cbranch_scc0 L_c2")
    g.e("L_c2ok:")
    stamp(g,o,6)
    for e in range(4): g.e(f"v_mul_f32 v{A+e}, v{A+e}, v{T0+1}")
    for e in range(4): g.e(f"v_fmac_f32 v{A+e}, v{B+e}, v{T1+1}")
    g.e("s_nop 0")
    g.e(f"v_permlane32_swap_b32 v{A}, v{A+1}")
    g.e(f"v_permlane32_swap_b32 v{A+2}, v{A+3}")
    g.e(f"v_add_f32 v{A}, v{A}, v{A+1}")
    g.e(f"v_add_f32 v{A+2}, v{A+2}, v{A+3}")
    g.e("s_nop 1")
    g.e(f"v_permlane16_swap_b32 v{A}, v{A+2}")
    g.e(f"v_add_f32 v{A}, v{A}, v{A+2}")
    g.e("s_nop 1")
    g.e(f"v_add_f32_dpp v{A}, v{A}, v{A} row_ror:4 row_mask:0xf bank_mask:0xf")
    g.e("s_nop 1")
    g.e(f"v_add_f32_dpp v{A}, v{A}, v{A} row_ror:8 row_mask:0xf bank_mask:0xf")
    g.e(f"s_mov_b32 exec_lo, 0x000f000f")
    g.e(f"s_mov_b32 exec_hi, 0x000f000f")
    g.e(f"v_cvt_pk_bf16_f32 v{A}, v{A}, v{A}")
    g.e(f"buffer_store_short v{A}, v12, s[{SRD_O}:{SRD_O+3}], 0 offen {o.outfl}")
    if o.stamps: g.e("s_waitcnt vmcnt(0)")
    stamp(g,o,7); stamp_store(g,o)
    g.e("s_endpgm")
    g.e("L_idle:")
    final_barrier()
    stamp(g,o,6); stamp(g,o,7); stamp_store(g,o)
    g.e("L_end:")
    g.e("s_endpgm")

def main_kernel(g, o):
    fused = o.fused
    NS = o.nslots
    ldf = o.ldflags
    kernel_begin(g, o.main_name)
    g.e("s_cmp_ge_u32 s2, 256")
    g.e("s_cbranch_scc1 L_end")
    stamp(g,o,0)
    if o.prio: g.e(f"s_setprio {o.prio}")
    g.e(f"s_load_dwordx16 s[4:19], s[0:1], 0")
    g.e(f"s_load_dwordx4 s[20:23], s[0:1], 64")
    if o.xmap:
        g.e("s_and_b32 s3, s2, 7"); g.e("s_lshl_b32 s3, s3, 5"); g.e("s_lshr_b32 s2, s2, 3"); g.e("s_add_u32 s2, s2, s3")
    g.e(f"v_lshrrev_b32 v1, 6, v0")
    g.e(f"v_and_b32 v0, 63, v0")
    g.e(f"v_readfirstlane_b32 s{S_WAVE}, v1")
    g.e("v_bfe_u32 v3, v0, 2, 1")
    g.e("v_and_b32 v4, 3, v0")
    g.e(f"v_lshlrev_b32 v{V_K}, 12, v3")
    g.e(f"v_lshl_add_u32 v{V_K}, v4, 9, v{V_K}")
    g.e("v_lshrrev_b32 v3, 3, v0")
    g.e(f"v_lshl_add_u32 v{V_K}, v3, 4, v{V_K}")
    g.e(f"s_lshl_b32 s{S_T0}, s2, 9")
    g.e(f"s_lshl_b32 s{S_T1}, s{S_WAVE}, 6")
    g.e(f"s_add_u32 s{S_T0}, s{S_T0}, s{S_T1}")
    g.e(f"s_lshl_b32 s{S_T1}, s{S_T0}, 9")
    g.e(f"s_lshl_b32 s{S_T2}, s{S_T0}, 1")
    g.e(f"s_mov_b32 s{S_8192}, 8192")
    g.e(f"s_mov_b32 s{S_16384}, 16384")
    g.e(f"s_mov_b32 s{S_24576}, 24576")
    g.e("v_lshrrev_b32 v3, 4, v0")
    g.e(f"v_and_b32 v{X}, 15, v0")
    g.e(f"v_lshlrev_b32 v{V_V}, 12, v3")
    g.e(f"v_lshl_add_u32 v{V_V}, v{X}, 4, v{V_V}")
    g.e(f"v_lshlrev_b32 v{X+1}, 4, v3")
    g.e(f"v_lshl_add_u32 v{X+2}, v4, 8, v{X+1}")
    g.e(f"v_bfe_i32 v{V_M1}, v0, 2, 1")
    g.e(f"v_and_b32 v{V_M1}, 0xffff0000, v{V_M1}")
    g.e(f"s_lshr_b32 s{S_HK}, s2, 5")
    g.e(f"s_and_b32 s{S_SPLIT}, s2, 31")
    g.e(f"s_mov_b32 s{S_HI}, 0xffff0000")
    g.e(f"s_mov_b32 s{S_C}, 0x{f2u(CEXP):08x}")
    g.e(f"s_mov_b32 s{S_PERM}, 0x07060302")
    g.e(f"s_mov_b32 s{S_NEG}, 0x80008000")
    if fused:
        g.e(f"s_getreg_b32 s{S_XCC}, hwreg(HW_REG_XCC_ID, 0, 4)")
        g.e(f"s_min_u32 s{S_XCC}, s{S_XCC}, 8")
    g.e("s_waitcnt lgkmcnt(0)")
    stamp2(g,o,1)
    srd(g, SRD_K, S_QK, S_T1, 32768)

    loads = []
    sok = {0:"0",8192:f"s{S_8192}",16384:f"s{S_16384}",24576:f"s{S_24576}"}
    for up in range(4):
        it = [(j,u) for j in range(4) for u in range(2)] if o.korder=="ju" else [(j,u) for u in range(2) for j in range(4)]
        for (j,u) in it:
            loads.append((("K",up,j,u), f"v{V_K}, s[{SRD_K}:{SRD_K+3}], {sok[16384*(up>>1)+8192*u]} offen offset:{2048*(up&1)+128*j}"))
    units = [(0,0),(0,1),(1,0),(1,1)] if o.vunits=="w" else [(0,0),(1,0),(0,1),(1,1)]
    for (wp,half) in units:
        for s_ in range(8):
            loads.append((("V",wp,half,s_), f"v{V_V}, s[{SRD_V}:{SRD_V+3}], {sok[16384*wp]} offen offset:{512*s_+256*half}"))
    slot_of = {}
    free = [RING+4*i for i in range(NS)]
    state = {"next":0}
    def issue(n=1):
        k=0
        for _ in range(n):
            i = state["next"]
            if i >= len(loads) or not free: break
            tag, rest = loads[i]
            slot = free.pop(0)
            slot_of[tag] = slot
            g.vmem(f"buffer_load_dwordx4 v[{slot}:{slot+3}], {rest} {ldf}", tag)
            state["next"] += 1; k+=1
        return k
    def release(*tags):
        for t_ in tags: free.append(slot_of[t_])

    def abc_srds():
        g.e(f"s_lshl_b32 s{S_T0}, s{S_HK}, 10")
        srd(g, SRD_A, S_Q, S_T0, 1024)
        g.e(f"s_lshr_b32 s{S_T0}, s2, 4")
        g.e(f"s_lshl_b32 s{S_T0}, s{S_T0}, 8")
        srd(g, SRD_B, S_KS, S_T0, 256)
        srd(g, SRD_C, S_KZ, S_T0, 256)
    def rec_srds():
        if o.compact:
            g.e(f"s_lshl_b32 s{S_XS}, s{S_HK}, 16")
            g.e(f"s_lshl_b32 s{S_XT}, s{S_SPLIT}, 6")
            g.e(f"s_add_u32 s{S_XS}, s{S_XS}, s{S_XT}")
            srd(g, SRD_W, S_WS, S_XS, 31*2048+64)
            g.e(f"s_lshl_b32 s{S_XS}, s{S_HK}, 10")
            g.e(f"s_lshl_b32 s{S_XT}, s{S_SPLIT}, 3")
            g.e(f"s_add_u32 s{S_XS}, s{S_XS}, s{S_XT}")
            g.e(f"s_add_u32 s{S_XS}, s{S_XS}, {STATS_OFF}")
            srd(g, SRD_T, S_WS, S_XS, 3*256+8)
        else:
            g.e(f"s_lshl_b32 s{S_XS}, s{S_HK}, 17")
            g.e(f"s_lshl_b32 s{S_XT}, s{S_SPLIT}, 7")
            g.e(f"s_add_u32 s{S_XS}, s{S_XS}, s{S_XT}")
            srd(g, SRD_W, S_WS, S_XS, 31*4096+128)
    def other_srds():
        srd(g, SRD_V, S_QV, S_T1, 32768)
        if not o.shared:
            srd(g, SRD_VS, S_VS, S_T2, 128)
            srd(g, SRD_VZ, S_VZ, S_T2, 128)
            abc_srds()
        rec_srds()
        if fused:
            g.e(f"s_lshl_b32 s{S_T0}, s{S_HK}, 5")
            srd(g, SRD_D, S_DBG, S_T0, 12)
    def clear(part=3):
        if "noclear" in o.dbg: return
        g.e(f"s_cmp_eq_u32 s{S_WAVE}, {o.clearwave}")
        g.e(f"s_cbranch_scc0 L_noclear{part}")
        if part & 1: clear_stores()
        if part & 2: clear_count()
        g.e(f"L_noclear{part}:")
    def clear_stores():
        if o.inbox:
            for k in range(4): g.e(f"v_mov_b32 v{R+k}, -1")
            g.e(f"s_lshl_b32 s{S_T0}, s2, 11")
            srd(g, SRD_O, S_WS, S_T0, 2048)
            g.e(f"v_lshlrev_b32 v{X+4}, 4, v0")
            g.e(f"buffer_store_dwordx4 v[{R}:{R+3}], v{X+4}, s[{SRD_O}:{SRD_O+3}], 0 offen sc1")
            g.e(f"buffer_store_dwordx4 v[{R}:{R+3}], v{X+4}, s[{SRD_O}:{SRD_O+3}], 0 offen offset:1024 sc1")
            g.e(f"s_and_b32 s{S_T0}, s2, 7")
            g.e(f"s_cmp_eq_u32 s{S_T0}, 0")
            g.e("s_cbranch_scc0 L_nostatclr")
            g.e(f"s_lshr_b32 s{S_T0}, s2, 3")
            g.e(f"s_lshl_b32 s{S_T0}, s{S_T0}, 8")
            g.e(f"s_add_u32 s{S_T0}, s{S_T0}, {STATS_OFF}")
            srd(g, SRD_O, S_WS, S_T0, 256)
            g.e(f"buffer_store_dwordx4 v[{R}:{R+3}], v{X+4}, s[{SRD_O}:{SRD_O+3}], 0 offen sc1")
            g.e("L_nostatclr:")
        else:
            for k in range(4): g.e(f"v_mov_b32 v{R+k}, -1")
            sh = 11 if o.compact else 12
            g.e(f"v_lshrrev_b32 v{X+4}, 2, v0")
            g.e(f"v_and_b32 v{X+5}, 3, v0")
            g.e(f"v_lshlrev_b32 v{X+4}, {sh}, v{X+4}")
            g.e(f"v_lshl_add_u32 v{X+4}, v{X+5}, 4, v{X+4}")
            g.e(f"s_mov_b32 s{S_T0}, {16<<sh}")
            g.e(f"buffer_store_dwordx4 v[{R}:{R+3}], v{X+4}, s[{SRD_W}:{SRD_W+3}], 0 offen sc1")
            g.e(f"buffer_store_dwordx4 v[{R}:{R+3}], v{X+4}, s[{SRD_W}:{SRD_W+3}], s{S_T0} offen sc1")
            if o.compact:
                g.e(f"v_lshlrev_b32 v{X+5}, 8, v{X+5}")
                g.e(f"buffer_store_dwordx2 v[{R}:{R+1}], v{X+5}, s[{SRD_T}:{SRD_T+3}], 0 offen sc1")
            else:
                g.e(f"v_and_b32 v{X+5}, 31, v0")
                g.e(f"v_lshlrev_b32 v{X+5}, 12, v{X+5}")
                g.e(f"buffer_store_dwordx4 v[{R}:{R+3}], v{X+5}, s[{SRD_W}:{SRD_W+3}], 0 offen offset:64 sc1")
    def clear_count():
        g.e(f"s_and_b32 s{S_T0}, s{S_XCC}, 3")
        g.e(f"s_lshl_b32 s{S_T0}, s{S_T0}, 3")
        g.e(f"s_lshl_b32 s{S_T0}, 1, s{S_T0}")
        g.e(f"s_lshr_b32 s{S_T1}, s{S_XCC}, 2")
        g.e(f"s_lshl_b32 s{S_T1}, s{S_T1}, 2")
        g.e(f"v_mov_b32 v{X+6}, s{S_T0}")
        if "plainclear" in o.dbg:
            for i in range(len(g.L)-1, len(g.L)-30, -1):
                if g.L[i].startswith("buffer_store") and g.L[i].endswith(" sc1"): g.L[i]=g.L[i][:-4]
        g.e("s_waitcnt vmcnt(0)")
        g.e(f"s_mov_b64 exec, 1")
        g.e(f"buffer_atomic_add v{X+6}, off, s[{SRD_D}:{SRD_D+3}], s{S_T1} sc1")
        g.e(f"s_mov_b64 exec, -1")
    QR=ACC; KSR=ACC+16; KZR=S
    def vs_loads():
        for k in range(2):
            g.vmem(f"buffer_load_dwordx4 v[{VS+4*k}:{VS+4*k+3}], v{X+1}, s[{SRD_VS}:{SRD_VS+3}], 0 offen offset:{64*k} {o.vsnt}", "vs")
            g.vmem(f"buffer_load_dwordx4 v[{VZ+4*k}:{VZ+4*k+3}], v{X+1}, s[{SRD_VZ}:{SRD_VZ+3}], 0 offen offset:{64*k} {o.vsnt}", "vz")
    def small_loads():
        if "nosmall" in o.dbg: return
        for j in range(4):
            g.vmem(f"buffer_load_dwordx4 v[{QR+4*j}:{QR+4*j+3}], v{X+2}, s[{SRD_A}:{SRD_A+3}], 0 offen offset:{64*j}", "q")
            g.vmem(f"buffer_load_dwordx4 v[{KSR+4*j}:{KSR+4*j+3}], v{X+1}, s[{SRD_B}:{SRD_B+3}], 0 offen offset:{64*j}", f"ks{j}")
        for j in range(4):
            g.vmem(f"buffer_load_dwordx4 v[{KZR+4*j}:{KZR+4*j+3}], v{X+1}, s[{SRD_C}:{SRD_C+3}], 0 offen offset:{64*j}", "kz")
        if o.vsearly: vs_loads()
    def qprime(qreg, ksreg, dst):
        for i in range(0,4,2):
            for k in range(2):
                q=qreg+i+k; ks=ksreg+i+k; t=X+4*k
                g.e(f"v_lshlrev_b32 v{t}, 16, v{q}")
                g.e(f"v_and_b32 v{t+1}, s{S_HI}, v{q}")
                g.e(f"v_lshlrev_b32 v{t+2}, 16, v{ks}")
                g.e(f"v_and_b32 v{t+3}, s{S_HI}, v{ks}")
            for k in range(2):
                t=X+4*k
                g.e(f"v_mul_f32 v{t}, v{t}, v{t+2}")
                g.e(f"v_mul_f32 v{t+1}, v{t+1}, v{t+3}")
            for k in range(2):
                t=X+4*k
                g.e(f"v_and_b32 v{t+2}, v{V_M1}, v{t}")
                g.e(f"v_and_b32 v{t+3}, v{V_M1}, v{t+1}")
            for k in range(2):
                t=X+4*k
                g.e(f"v_sub_f32 v{t}, v{t}, v{t+2}")
                g.e(f"v_sub_f32 v{t+1}, v{t+1}, v{t+3}")
            for k in range(2):
                t=X+4*k
                g.e(f"v_perm_b32 v{dst+i+k}, v{t+1}, v{t}, s{S_PERM}")
    if o.shared:
        issue(o.kpre)
        g.e(f"s_cmp_ge_u32 s{S_WAVE}, 4")
        g.e("s_cbranch_scc1 L_nosmall")
        abc_srds()
        g.e(f"s_lshl_b32 s{S_T0}, s{S_WAVE}, 6")
        g.e(f"buffer_load_dwordx4 v[{ACC}:{ACC+3}], v{X+2}, s[{SRD_A}:{SRD_A+3}], s{S_T0} offen")
        g.e(f"buffer_load_dwordx4 v[{ACC+4}:{ACC+7}], v{X+1}, s[{SRD_B}:{SRD_B+3}], s{S_T0} offen")
        g.e(f"buffer_load_dwordx4 v[{ACC+8}:{ACC+11}], v{X+1}, s[{SRD_C}:{SRD_C+3}], s{S_T0} offen")
        g.e(f"s_cmp_eq_u32 s{S_WAVE}, 0")
        g.e("s_cbranch_scc0 L_nosmall")
        g.e(f"s_lshl_b32 s{S_T0}, s2, 10")
        srd(g, SRD_VS, S_VS, S_T0, 1024)
        srd(g, SRD_VZ, S_VZ, S_T0, 1024)
        g.e(f"v_lshlrev_b32 v{X+3}, 4, v0")
        g.e(f"buffer_load_dwordx4 v[{ACC+12}:{ACC+15}], v{X+3}, s[{SRD_VS}:{SRD_VS+3}], 0 offen")
        g.e(f"buffer_load_dwordx4 v[{ACC+16}:{ACC+19}], v{X+3}, s[{SRD_VZ}:{SRD_VZ+3}], 0 offen")
        g.e("L_nosmall:")
        other_srds()
        issue(32-o.kpre)
        stamp(g,o,1)
        g.e(f"s_cmp_ge_u32 s{S_WAVE}, 4")
        g.e("s_cbranch_scc1 L_bar0")
        g.e(f"v_lshlrev_b32 v{V_T0}, 4, v0")
        g.e(f"s_lshl_b32 s{S_T0}, s{S_WAVE}, 10")
        g.e(f"v_add_u32 v{V_T1}, s{S_T0}, v{V_T0}")
        g.e(f"s_waitcnt vmcnt({32-o.kpre})")
        qprime(ACC, ACC+4, QP)
        g.e(f"v_and_b32 v{X}, 3, v0")
        g.e(f"s_lshl_b32 s{S_T0}, s{S_WAVE}, 2")
        g.e(f"v_mfma_f32_16x16x32_bf16 v[{CACC}:{CACC+3}], v[{ACC+8}:{ACC+11}], v[{QP}:{QP+3}], 0")
        g.e(f"ds_write_b128 v{V_T1}, v[{QP}:{QP+3}] offset:{LDS_Q}")
        g.e(f"v_lshl_add_u32 v{X}, v{X}, 4, s{S_T0}")
        g.e(f"s_cmp_eq_u32 s{S_WAVE}, 0")
        g.e("s_cbranch_scc0 L_novs")
        g.e(f"ds_write_b128 v{V_T0}, v[{ACC+12}:{ACC+15}] offset:{LDS_VS}")
        g.e(f"ds_write_b128 v{V_T0}, v[{ACC+16}:{ACC+19}] offset:{LDS_VZ}")
        g.e("L_novs:")
        g.e("s_nop 7")
        g.e(f"v_add_f32_dpp v{V_BIAS}, v{CACC}, v{CACC} row_ror:4 row_mask:0xf bank_mask:0xf")
        g.e("s_mov_b64 exec, 15")
        g.e(f"ds_write_b32 v{X}, v{V_BIAS} offset:{LDS_B}")
        g.e("s_mov_b64 exec, -1")
        if fused: clear()
        g.e("s_waitcnt lgkmcnt(0)")
        g.e("L_bar0:")
    elif o.kfirst:
        if fused and o.clearpos=="first":
            other_srds(); clear(); issue(32)
        else:
            issue(8); other_srds(); issue(24)
            if fused: clear_after=True
        if o.tlbw:
            g.vmem(f"buffer_load_dword v{X+7}, off, s[{SRD_V}:{SRD_V+3}], 0 {ldf}", "tlb")
        small_loads()
        if fused and o.clearpos=="split": clear(2)
        elif fused and o.clearpos!="first": clear()
    else:
        if fused and o.clearpos=="split":
            g.e(f"s_cmp_eq_u32 s{S_WAVE}, {o.clearwave}")
            g.e("s_cbranch_scc0 L_nopre")
            rec_srds()
            clear_stores()
            g.e("L_nopre:")
        issue(o.kpre)
        stamp2(g,o,2)
        other_srds()
        if fused and o.clearpos=="first": clear()
        if o.tlbw:
            g.vmem(f"buffer_load_dword v{X+7}, off, s[{SRD_V}:{SRD_V+3}], 0 {ldf}", "tlb")
        small_loads()
        stamp2(g,o,3)
        issue(32-o.kpre)
        if o.prio: g.e("s_setprio 0")
        stamp2(g,o,4)
        if fused and o.clearpos=="split": clear(2)
        elif fused and o.clearpos!="first": clear()
    if not o.shared: stamp(g,o,1)
    if (o.bar0 or o.shared) and "nobar" not in o.dbg: g.e("s_barrier")
    if o.shared:
        g.e(f"v_lshlrev_b32 v{V_T0}, 4, v0")
        g.e(f"s_lshl_b32 s{S_T0}, s{S_WAVE}, 7")
        g.e(f"v_and_b32 v{V_T1}, 0x30, v0")
        g.e(f"v_add_u32 v{V_T1}, s{S_T0}, v{V_T1}")
        for j in range(4): g.e(f"ds_read_b128 v[{QP+4*j}:{QP+4*j+3}], v{V_T0} offset:{LDS_Q+1024*j}")
        for k in range(2):
            g.e(f"ds_read_b128 v[{VS+4*k}:{VS+4*k+3}], v{V_T1} offset:{LDS_VS+64*k}")
            g.e(f"ds_read_b128 v[{VZ+4*k}:{VZ+4*k+3}], v{V_T1} offset:{LDS_VZ+64*k}")
        issue(NS-32)
        g.e("s_waitcnt lgkmcnt(0)")
    else:
        if not o.vsearly: vs_loads()
        issue(NS-32)
        g.c("---- q' ----")
        for j in range(4):
            g.wait(f"ks{j}")
            qprime(QR+4*j, KSR+4*j, QP+4*j)
        g.c("---- bias = q'.kz ----")
        if not g.wait("kz"): g.e("s_nop 1")
        for j in range(4):
            c = "0" if j==0 else f"v[{CACC}:{CACC+3}]"
            g.e(f"v_mfma_f32_16x16x32_bf16 v[{CACC}:{CACC+3}], v[{KZR+4*j}:{KZR+4*j+3}], v[{QP+4*j}:{QP+4*j+3}], {c}")
    stamp(g,o,2)
    g.c("---- QK ----")
    first=True
    for up in range(4):
        for j in range(4):
            g.wait(("K",up,j,1) if o.korder=="ju" else ("K",up,j,1))
            a=slot_of[("K",up,j,0)]; b=slot_of[("K",up,j,1)]
            for e in range(4): g.e(f"v_cvt_f32_i32 v{X+e}, v{a+e}")
            for e in range(4): g.e(f"v_cvt_f32_i32 v{X+4+e}, v{b+e}")
            for e in range(4): g.e(f"v_cvt_f32_i32_dpp v{X+e}, v{b+e} row_ror:8 row_mask:0xf bank_mask:0xc")
            for e in range(4): g.e(f"v_cvt_f32_i32_dpp v{X+4+e}, v{a+e} row_ror:8 row_mask:0xf bank_mask:0x3")
            if first and not o.shared:
                g.e(f"v_add_f32_dpp v{V_BIAS}, v{CACC}, v{CACC} row_ror:4 row_mask:0xf bank_mask:0xf")
            first=False
            for k in range(4): g.e(f"v_cvt_pk_bf16_f32 v{R+k}, v{X+2*k}, v{X+2*k+1}")
            release(("K",up,j,0),("K",up,j,1))
            k_=issue(2)
            if k_ < 2: g.e("s_nop 1")
            c = "0" if j==0 else f"v[{S+4*up}:{S+4*up+3}]"
            g.e(f"v_mfma_f32_16x16x32_bf16 v[{S+4*up}:{S+4*up+3}], v[{R}:{R+3}], v[{QP+4*j}:{QP+4*j+3}], {c}")
    issue(100)
    assert state["next"]==len(loads)
    if fused:
        o.V_RDY = free.pop(0)
        if o.rdy4:
            g.e(f"s_cmp_lt_u32 s{S_WAVE}, 4")
            g.e("s_cbranch_scc0 L_nordy")
            g.e(f"buffer_load_dwordx3 v[{o.V_RDY}:{o.V_RDY+2}], off, s[{SRD_D}:{SRD_D+3}], 0 sc1")
            g.e("L_nordy:")
        else:
            g.e(f"buffer_load_dwordx3 v[{o.V_RDY}:{o.V_RDY+2}], off, s[{SRD_D}:{SRD_D+3}], 0 sc1")
            g.vm.append("rdy")
    stamp(g,o,3)
    g.c("---- max ----")
    g.e("s_nop 6" if fused else "s_nop 7")
    for i in range(16):
        g.e(f"v_add_f32_dpp v{S+i}, v{S+i}, v{S+i} row_ror:4 row_mask:0xf bank_mask:0xf")
    m=V_T0; t=V_T1
    g.e(f"v_max3_f32 v{m}, v{S}, v{S+1}, v{S+2}")
    g.e(f"v_max3_f32 v{t}, v{S+3}, v{S+4}, v{S+5}")
    g.e(f"v_max3_f32 v{m}, v{m}, v{S+6}, v{S+7}")
    g.e(f"v_max3_f32 v{t}, v{t}, v{S+8}, v{S+9}")
    g.e(f"v_max3_f32 v{m}, v{m}, v{S+10}, v{S+11}")
    g.e(f"v_max3_f32 v{t}, v{t}, v{S+12}, v{S+13}")
    g.e(f"v_max3_f32 v{m}, v{m}, v{S+14}, v{S+15}")
    g.e(f"v_max_f32 v{m}, v{m}, v{t}")
    def xreduce(op, m, t):
        g.e(f"v_mov_b32 v{t}, v{m}"); g.e("s_nop 1")
        g.e(f"v_permlane16_swap_b32 v{t}, v{m}")
        g.e(f"{op} v{m}, v{m}, v{t}")
        g.e(f"v_mov_b32 v{t}, v{m}"); g.e("s_nop 1")
        g.e(f"v_permlane32_swap_b32 v{t}, v{m}")
        g.e(f"{op} v{m}, v{m}, v{t}")
    xreduce("v_max_f32", m, t)
    g.e(f"v_and_b32 v{X+2}, 3, v0")
    g.e(f"v_lshlrev_b32 v{X+1}, 5, v{X+2}")
    g.e(f"s_lshl_b32 s{S_T0}, s{S_WAVE}, 2")
    g.e(f"v_add_u32 v{X+1}, s{S_T0}, v{X+1}")
    g.e(f"v_lshlrev_b32 v{X+2}, 2, v{X+2}")
    g.e("s_mov_b64 exec, 15")
    g.e(f"ds_write_b32 v{X+1}, v{m} offset:{LDS_M}")
    if not o.shared: g.e(f"ds_write_b32 v{X+2}, v{V_BIAS} offset:{LDS_B}")
    g.e("s_mov_b64 exec, -1")
    g.e(f"v_mov_b32 v{V_BIAS}, v{X+1}")
    if not o.shared: g.wait("vz")
    for k in range(8): g.e(f"v_xor_b32 v{VZ+k}, s{S_NEG}, v{VZ+k}")
    g.e(f"v_mul_f32 v{m}, s{S_C}, v{m}")
    g.c("---- softmax numerators ----")
    PA=QP
    for i0 in range(0,16,4):
        for i in range(i0,i0+4): g.e(f"v_fma_f32 v{S+i}, v{S+i}, s{S_C}, -v{m}")
        for i in range(i0,i0+4): g.e(f"v_exp_f32 v{S+i}, v{S+i}")
        for i in range(i0,i0+4):
            src=VS+(i>>1)
            if i&1: g.e(f"v_and_b32 v{X+i-i0}, s{S_HI}, v{src}")
            else:   g.e(f"v_lshlrev_b32 v{X+i-i0}, 16, v{src}")
        for i in range(i0,i0+4):
            if i==0: g.e(f"v_mov_b32 v{V_L}, v{S}")
            else:    g.e(f"v_add_f32 v{V_L}, v{V_L}, v{S+i}")
        for i in range(i0,i0+4): g.e(f"v_mul_f32 v{S+i}, v{S+i}, v{X+i-i0}")
        for i in range(i0,i0+4): g.e(f"v_and_b32 v{X+4+i-i0}, v{V_M1}, v{S+i}")
        for i in range(i0,i0+4): g.e(f"v_sub_f32 v{S+i}, v{S+i}, v{X+4+i-i0}")
        for i in range(i0,i0+4,2): g.e(f"v_perm_b32 v{PA+(i>>1)}, v{S+i+1}, v{S+i}, s{S_PERM}")
    xreduce("v_add_f32", V_L, t)
    g.e(f"v_mfma_f32_16x16x32_bf16 v[{CACC}:{CACC+3}], v[{PA}:{PA+3}], v[{VZ}:{VZ+3}], 0")
    g.e(f"v_mfma_f32_16x16x32_bf16 v[{CACC}:{CACC+3}], v[{PA+4}:{PA+7}], v[{VZ+4}:{VZ+7}], v[{CACC}:{CACC+3}]")
    g.e("s_mov_b64 exec, 15")
    g.e(f"ds_write_b32 v{V_BIAS}, v{V_L} offset:{LDS_Lr}")
    g.e("s_mov_b64 exec, -1")
    def bar1():
        g.e(f"s_cmp_lt_u32 s{S_WAVE}, 4")
        g.e("s_cbranch_scc1 L_nobar1")
        g.e("s_waitcnt lgkmcnt(0)")
        g.e("s_barrier")
        g.e("L_nobar1:")
    if o.early and o.bar1pos<0: bar1()
    g.e(f"v_lshrrev_b32 v{V_T0}, 4, v0")
    g.e(f"v_and_b32 v{V_T1}, 15, v0")
    g.e(f"v_lshlrev_b32 v{V_T0}, 9, v{V_T0}")
    g.e(f"v_lshl_add_u32 v{V_T0}, v{V_T1}, 4, v{V_T0}")
    g.e(f"s_lshl_b32 s{S_T0}, s{S_WAVE}, 11")
    g.e(f"v_add_u32 v{V_T0}, s{S_T0}, v{V_T0}")
    g.c("---- PV ----")
    done_wp = {0:set(),1:set()}
    for ui,(wp,half) in enumerate(units):
        firstacc = len(done_wp[half])==0
        if o.fineV:
            for k in range(4):
                g.wait(("V",wp,half,2*k+1))
                if ui==3 and k==3: stamp(g,o,4)
                for e in range(4): g.e(f"v_cvt_f32_i32 v{X+e}, v{slot_of[('V',wp,half,2*k)]+e}")
                for e in range(4): g.e(f"v_cvt_f32_i32 v{X+4+e}, v{slot_of[('V',wp,half,2*k+1)]+e}")
                for e in range(4): g.e(f"v_cvt_pk_bf16_f32 v{S+4*e+k}, v{X+e}, v{X+4+e}")
            for e in range(4):
                if e==0: g.e("s_nop 0")
                a_=ACC+16*half+4*e
                c = f"v[{CACC}:{CACC+3}]" if firstacc else f"v[{a_}:{a_+3}]"
                g.e(f"v_mfma_f32_16x16x32_bf16 v[{a_}:{a_+3}], v[{PA+4*wp}:{PA+4*wp+3}], v[{S+4*e}:{S+4*e+3}], {c}")
        else:
            g.wait(("V",wp,half,7))
            if ui==3: stamp(g,o,4)
            for e in range(4):
                for s_ in range(8):
                    g.e(f"v_cvt_f32_i32 v{X+s_}, v{slot_of[('V',wp,half,s_)]+e}")
                for k in range(4): g.e(f"v_cvt_pk_bf16_f32 v{R+k}, v{X+2*k}, v{X+2*k+1}")
                g.e("s_nop 1")
                a_=ACC+16*half+4*e
                c = f"v[{CACC}:{CACC+3}]" if firstacc else f"v[{a_}:{a_+3}]"
                g.e(f"v_mfma_f32_16x16x32_bf16 v[{a_}:{a_+3}], v[{PA+4*wp}:{PA+4*wp+3}], v[{R}:{R+3}], {c}")
        done_wp[half].add(wp)
        if o.early and o.bar1pos==ui: bar1()
        if len(done_wp[half])==2:
            g.c(f"compaction half {half}")
            g.e("s_nop 7" if not o.fineV else "s_nop 4")
            for e in range(4):
                a_=ACC+16*half+4*e
                g.e(f"v_permlane16_swap_b32 v{a_}, v{a_+1}")
                g.e(f"v_permlane16_swap_b32 v{a_+2}, v{a_+3}")
            for e in range(4):
                a_=ACC+16*half+4*e
                g.e(f"v_add_f32 v{X+e}, v{a_}, v{a_+1}")
                g.e(f"v_add_f32 v{X+4+e}, v{a_+2}, v{a_+3}")
            g.e("s_nop 0")
            for e in range(4):
                g.e(f"v_permlane32_swap_b32 v{X+e}, v{X+4+e}")
            g.e(f"ds_write_b128 v{V_T0}, v[{X}:{X+3}] offset:{LDS_O+256*half}")
            if ui!=3: g.e("s_nop 1")

    if "notail" in o.dbg:
        g.e("s_endpgm")
    def fast_calc():
        if fused and o.fast==1:
            g.e(f"v_readfirstlane_b32 s{S_T0}, v{o.V_RDY}")
            g.e(f"v_readfirstlane_b32 s{S_T1}, v{o.V_RDY+1}")
            g.e(f"s_cmp_ge_u32 s{S_XCC}, 4")
            g.e(f"s_cselect_b32 s{S_T0}, s{S_T1}, s{S_T0}")
            g.e(f"s_and_b32 s{S_T1}, s{S_XCC}, 3")
            g.e(f"s_lshl_b32 s{S_T1}, s{S_T1}, 3")
            g.e(f"s_lshr_b32 s{S_T0}, s{S_T0}, s{S_T1}")
            g.e(f"s_and_b32 s{S_T0}, s{S_T0}, 0xff")
            g.e(f"s_cmp_eq_u32 s{S_T0}, 32")
            g.e(f"s_cselect_b32 s{S_FAST}, 1, 0")
            g.e(f"s_cmp_ge_u32 s{S_XCC}, 8")
            g.e(f"s_cselect_b32 s{S_FAST}, 0, s{S_FAST}")
    def final_barrier():
        g.e("s_waitcnt lgkmcnt(0)")
        g.e("s_barrier")
        stamp(g,o,5)
    if o.early:
        early_tail(g, o, fast_calc, final_barrier)
        return
    g.c("---- tail roles ----")
    nrole = 4 if fused else 3
    if o.presetup:
        g.e(f"s_cmp_ge_u32 s{S_WAVE}, {nrole}")
        g.e("s_cbranch_scc1 L_idle")
        if fused:
            g.e("s_waitcnt vmcnt(0)")
            fast_calc()
    else:
        if fused:
            if o.rdy4: g.e("s_waitcnt vmcnt(0)")
            else: g.wait("rdy")
            fast_calc()
        final_barrier()
        g.e(f"s_cmp_ge_u32 s{S_WAVE}, {nrole}")
        g.e("s_cbranch_scc1 L_idle")
    g.e(f"s_cmp_eq_u32 s{S_WAVE}, 2")
    g.e("s_cbranch_scc1 L_stats")
    if fused:
        g.e(f"s_cmp_eq_u32 s{S_WAVE}, 3")
        g.e("s_cbranch_scc1 L_cons")
    g.e(f"s_lshl_b32 s{S_T0}, s{S_WAVE}, 6")
    g.e(f"v_add_u32 v1, s{S_T0}, v0")
    g.e(f"v_lshrrev_b32 v5, 5, v1")
    g.e(f"v_lshlrev_b32 v5, 5, v5")
    g.e(f"v_lshlrev_b32 v2, 4, v1")
    g.e(f"v_lshrrev_b32 v6, 2, v1")
    g.e(f"v_and_b32 v4, 3, v1")
    g.e(f"v_lshlrev_b32 v6, {11 if o.compact else 12}, v6")
    g.e(f"v_lshl_add_u32 v4, v4, 4, v6")
    if o.presetup: final_barrier()
    g.e(f"ds_read_b128 v[8:11], v5 offset:{LDS_M}")
    g.e(f"ds_read_b128 v[12:15], v5 offset:{LDS_M+16}")
    for w in range(8):
        g.e(f"ds_read_b128 v[{16+4*w}:{19+4*w}], v2 offset:{LDS_O+2048*w}")
    g.e("s_waitcnt lgkmcnt(8)")
    g.e("v_max3_f32 v6, v8, v9, v10"); g.e("v_max3_f32 v7, v11, v12, v13"); g.e("v_max3_f32 v6, v6, v14, v15"); g.e("v_max_f32 v6, v6, v7")
    g.e(f"v_mul_f32 v6, s{S_C}, v6")
    for w in range(8): g.e(f"v_fma_f32 v{8+w}, v{8+w}, s{S_C}, -v6")
    for w in range(8): g.e(f"v_exp_f32 v{8+w}, v{8+w}")
    g.e("s_waitcnt lgkmcnt(7)")
    for e in range(4): g.e(f"v_mul_f32 v{16+e}, v{16+e}, v8")
    for w in range(1,8):
        g.e(f"s_waitcnt lgkmcnt({7-w})")
        for e in range(4): g.e(f"v_fmac_f32 v{16+e}, v{16+4*w+e}, v{8+w}")
    for e in range(4): g.e(f"v_min_u32 v{16+e}, -2, v{16+e}")
    publish(g,o,16,4,4,SRD_W,0,"L_po")
    stamp(g,o,6)
    if o.stamps: g.e("s_waitcnt vmcnt(0)")
    stamp(g,o,7); stamp_store(g,o)
    g.e("s_endpgm")
    g.e("L_stats:")
    if o.compact:
        g.e(f"v_and_b32 v1, 3, v0")
        g.e(f"v_lshlrev_b32 v4, 8, v1")
    else:
        g.e(f"v_lshrrev_b32 v1, 3, v0")
        g.e(f"v_and_b32 v1, 3, v1")
        g.e(f"v_lshlrev_b32 v4, 12, v0")
    g.e(f"v_lshlrev_b32 v2, 5, v1")
    g.e(f"v_lshlrev_b32 v3, {4 if o.shared else 2}, v1")
    if o.presetup: final_barrier()
    g.e(f"ds_read_b128 v[24:27], v2 offset:{LDS_M}")
    g.e(f"ds_read_b128 v[28:31], v2 offset:{LDS_M+16}")
    g.e(f"ds_read_b128 v[16:19], v2 offset:{LDS_Lr}")
    g.e(f"ds_read_b128 v[20:23], v2 offset:{LDS_Lr+16}")
    if o.shared: g.e(f"ds_read_b128 v[32:35], v3 offset:{LDS_B}")
    else: g.e(f"ds_read_b32 v32, v3 offset:{LDS_B}")
    g.e("s_waitcnt lgkmcnt(3)")
    g.e("v_max3_f32 v6, v24, v25, v26"); g.e("v_max3_f32 v7, v27, v28, v29"); g.e("v_max3_f32 v6, v6, v30, v31"); g.e("v_max_f32 v6, v6, v7")
    g.e(f"v_mul_f32 v7, s{S_C}, v6")
    for w in range(8): g.e(f"v_fma_f32 v{24+w}, v{24+w}, s{S_C}, -v7")
    for w in range(8): g.e(f"v_exp_f32 v{24+w}, v{24+w}")
    g.e("s_waitcnt lgkmcnt(0)")
    if o.shared:
        g.e("v_add_f32 v32, v32, v33"); g.e("v_add_f32 v34, v34, v35"); g.e("v_add_f32 v32, v32, v34")
    g.e("v_sub_f32 v6, v6, v32")
    g.e("v_mul_f32 v16, v16, v24")
    g.e("v_mul_f32 v18, v18, v26")
    g.e("v_fmac_f32 v16, v17, v25")
    g.e("v_fmac_f32 v18, v19, v27")
    g.e("v_fmac_f32 v16, v20, v28")
    g.e("v_fmac_f32 v18, v21, v29")
    g.e("v_fmac_f32 v16, v22, v30")
    g.e("v_fmac_f32 v18, v23, v31")
    g.e(f"v_mul_f32 v17, s{S_C}, v6")
    g.e("v_add_f32 v16, v16, v18")
    g.e("v_min_u32 v17, -2, v17")
    g.e("v_min_u32 v16, -2, v16")
    if o.compact:
        g.e("s_mov_b64 exec, 15")
        publish(g,o,16,2,4,SRD_T,0,"L_ps")
    else:
        g.e("v_mov_b32 v18, 0"); g.e("v_mov_b32 v19, 0")
        g.e("s_mov_b32 exec_hi, 0")
        publish(g,o,16,4,4,SRD_W,64,"L_ps")
    stamp(g,o,6); stamp(g,o,7); stamp_store(g,o)
    g.e("s_endpgm")
    if fused:
        g.e("L_cons:")
        if "nocons" in o.dbg:
            final_barrier(); g.e("s_endpgm")
        consumer_setup(g,o)
        consumer(g, True, "L_c", o, final_barrier if o.presetup else None)
        if o.stamps: g.e("s_waitcnt vmcnt(0)")
        stamp(g,o,7); stamp_store(g,o)
        g.e("s_endpgm")
    g.e("L_idle:")
    if o.presetup: final_barrier()
    stamp(g,o,6); stamp(g,o,7); stamp_store(g,o)
    g.e("L_end:")
    g.e("s_endpgm")

def combine_kernel(g, o):
    kernel_begin(g, o.comb_name)
    g.e("s_cmp_ge_u32 s2, 256")
    g.e("s_cbranch_scc1 L2_end")
    g.e(f"s_load_dwordx2 s[{S_OUT}:{S_OUT+1}], s[0:1], 56")
    g.e(f"s_load_dwordx2 s[{S_WS}:{S_WS+1}], s[0:1], 72")
    g.e("s_waitcnt lgkmcnt(0)")
    consumer_setup(g,o)
    st=o.stamps; o.stamps=0
    consumer(g, False, "L2_c", o)
    o.stamps=st
    g.e("L2_end:")
    g.e("s_endpgm")

def strip_compute(L):
    out=[]; on=False
    for l in L:
        if l.startswith("; ---- q' ----") or l.startswith("; ---- QK ----"): on=True
        if l.startswith("; ---- tail roles"): on=False
        if on and (l.startswith("v_") or l.startswith("ds_") or l.startswith("s_nop")): continue
        out.append(l)
    return out

def build(o):
    g = G()
    o.lds = LDS_SIZE1 if o.shared else LDS_SIZE0
    g.L.append(HEADER.rstrip("\n"))
    if o.fused:
        o.main_name = KN
        g.e(f"; @launch grid=(256,1,1) block=(512,1,1) lds={o.lds}")
    else:
        o.main_name = "kvdec_main_kernel"
        o.comb_name = "kvdec_combine_kernel"
        g.e(f"; @launch kernel={o.main_name} grid=(256,1,1) block=(512,1,1) lds={o.lds}")
        g.e(f"; @launch kernel={o.comb_name} grid=(256,1,1) block=(64,1,1) lds=0")
    if o.fused:
        for l in DOC.strip("\n").split("\n"): g.e(("; " + l).rstrip())
    g.e('.amdgcn_target "amdgcn-amd-amdhsa--gfx950"')
    g.e(".text")
    main_kernel(g, o)
    if not o.fused: combine_kernel(g, o)
    g.e('.section .rodata,"a"')
    kernel_desc(g, o.main_name, RING + 4*o.nslots)
    if not o.fused: kernel_desc(g, o.comb_name, 40)
    if "nocomp" in o.dbg: g.L = strip_compute(g.L)
    return "\n".join(g.L) + "\n"

def parse(argv):
    ap = argparse.ArgumentParser()
    ap.add_argument("out")
    ap.add_argument("--fused", type=int, default=1)
    ap.add_argument("--nslots", type=int, default=38)
    ap.add_argument("--ld", default="nt")
    ap.add_argument("--stamps", type=int, default=0)
    ap.add_argument("--xmap", type=int, default=0)
    ap.add_argument("--bar0", type=int, default=1)
    ap.add_argument("--korder", default="ju")
    ap.add_argument("--vunits", default="w")
    ap.add_argument("--kfirst", type=int, default=0)
    ap.add_argument("--clearpos", default="first")
    ap.add_argument("--tlbw", type=int, default=0)
    ap.add_argument("--fast", type=int, default=0)
    ap.add_argument("--outfl", default="")
    ap.add_argument("--vsearly", type=int, default=0)
    ap.add_argument("--rdy4", type=int, default=0)
    ap.add_argument("--compact", type=int, default=0)
    ap.add_argument("--presetup", type=int, default=0)
    ap.add_argument("--clearwave", type=int, default=0)
    ap.add_argument("--kpre", type=int, default=0)
    ap.add_argument("--fineV", type=int, default=0)
    ap.add_argument("--shared", type=int, default=0)
    ap.add_argument("--dbg", default="")
    ap.add_argument("--early", type=int, default=0)
    ap.add_argument("--outwarm", type=int, default=0)
    ap.add_argument("--prio", type=int, default=0)
    ap.add_argument("--bar1pos", type=int, default=-1)
    ap.add_argument("--vsnt", default="")
    ap.add_argument("--inbox", type=int, default=0)
    o = ap.parse_args(argv)
    o.ldflags = o.ld
    o.V_RDY = None
    return o

if __name__ == "__main__":
    o = parse(sys.argv[1:])
    open(o.out, "w").write(build(o))
```

```python
import sys, argparse, struct

KN = "standalone__kv_cache_quant_int4_int2_kv_with_per_channel_or_per_token_scales__decode_kernel"
HEADER = """; Kernarg layout (80 bytes, ptrs only, base s[0:1]):
;   24: k_scales (1,8,2,128) bf16 | 32: k_zeros | 40: v_scales (1,8,16384,1) bf16 | 48: v_zeros
"""

DOC = """
Decode attention over an int32-stored quantized KV cache (GQA 32 q heads / 8 kv heads, 16384 tokens, d = 128).
One workgroup (8 waves) per CU = (kv head, 512 tokens); one wave = 64 tokens.  The kernel streams 128 MiB once.
  scores : q' = q * k_scale is an exact 16-bit product, split in bf16 hi + lo (MFMA columns = rep x head);
           S = K_int . q'  (K ints -> f32 -> bf16, MFMA 16x16x32); the k_zero term q'.k_zero is one constant
           per (head, group) and is folded into the published maximum.
  softmax: true maximum per wave, rescaled with the true maxima across waves and workgroups.
  values : P' = p * v_scale (bf16 hi + lo rows), O = P' . V_int - P' . v_zero (MFMA; the zero term seeds the
           accumulators).
  loads  : K rows as 8 x 128 B segments (lane pairs 8 apart exchanged by DPP during the conversion), V rows as
           4 x 256 B segments (the transposition is free: the bf16 packing picks the registers).
  combine: every workgroup publishes 32 records (16 outputs each) + (sum, max) per head in d_ws; wave 3 of
           workgroup j polls the 32 records of slice j and writes 16 outputs.  Records are first overwritten with
           a sentinel (all ones, never published) and counted in d_debug, one byte counter per XCD: a consumer
           reads only after all 32 counts are in.  Records are stored write-through, or plainly (same L2) when
           the counters show that the whole kv head runs on this XCD.
"""

class G:
    def __init__(self):
        self.L = []
        self.vm = []
    def e(self, s): self.L.append(s)
    def c(self, s): self.L.append("; " + s)
    def vmem(self, s, tag):
        self.L.append(s); self.vm.append(tag)
    def wait(self, tag):
        if tag not in self.vm: return False
        idx = len(self.vm) - 1 - self.vm[::-1].index(tag)
        n = len(self.vm) - 1 - idx
        assert n <= 63
        self.e(f"s_waitcnt vmcnt({n})")
        self.vm = self.vm[idx + 1:]
        return True

V_LANE=0; V_K=1; V_V=2; V_T0=3; V_T1=4; V_M1=5; V_BIAS=6; V_L=7
QP=8
S=24
ACC=40
VS=72; VZ=80
X=88
R=96
CACC=100
RING=104
S_WAVE=3
S_Q=4; S_QK=6; S_QV=8; S_KS=10; S_KZ=12; S_VS=14; S_VZ=16; S_OUT=18; S_DBG=20; S_WS=22
SRD_K=24; SRD_V=28; SRD_A=32; SRD_B=36; SRD_C=40; SRD_VS=44; SRD_VZ=48; SRD_W=52; SRD_O=56; SRD_D=60; SRD_T=96
S_HI=64; S_C=65; S_PERM=66; S_8192=67; S_16384=68; S_24576=69; S_T0=70; S_T1=71; S_T2=72; S_HK=73; S_SPLIT=74; S_NEG=75
S_XCC=76; S_FAST=77; S_XS=78; S_XT=79
S_ST=80
CEXP = 0.08838834764831845 * 1.4426950408889634
def f2u(x): return struct.unpack("<I", struct.pack("<f", x))[0]

STATS_OFF=0x100000
LDS_M=0
LDS_Lr=128
LDS_B=256
LDS_O=512
LDS_Q=512+8*2048
LDS_VS=LDS_Q+4096
LDS_VZ=LDS_VS+1024
LDS_SIZE0=512+8*2048
LDS_SIZE1=LDS_VZ+1024

def srd(g, dst, base, off_sreg, size):
    if off_sreg is None:
        g.e(f"s_mov_b32 s{dst}, s{base}"); g.e(f"s_mov_b32 s{dst+1}, s{base+1}")
    else:
        g.e(f"s_add_u32 s{dst}, s{base}, s{off_sreg}"); g.e(f"s_addc_u32 s{dst+1}, s{base+1}, 0")
    g.e(f"s_mov_b32 s{dst+2}, {size}")
    g.e(f"s_mov_b32 s{dst+3}, 0x20000")

def kernel_begin(g, name):
    g.e(f".globl {name}"); g.e(".p2align 8"); g.e(f".type {name},@function"); g.e(f"{name}:")

def kernel_desc(g, name, nv, ns=100):
    nv8 = (nv + 7) // 8 * 8
    g.e(".p2align 6")
    g.e(f".amdhsa_kernel {name}")
    g.e(f"  .amdhsa_next_free_vgpr {nv8}")
    g.e(f"  .amdhsa_next_free_sgpr {ns}")
    g.e(f"  .amdhsa_accum_offset {min(256,(nv+3)//4*4)}")
    g.e("  .amdhsa_group_segment_fixed_size 0")
    g.e("  .amdhsa_kernarg_size 80")
    g.e("  .amdhsa_user_sgpr_count 2")
    g.e("  .amdhsa_user_sgpr_kernarg_segment_ptr 1")
    g.e("  .amdhsa_system_sgpr_workgroup_id_x 1")
    g.e(".end_amdhsa_kernel")

def stamp(g, o, k):
    if o.stamps==1 or (o.stamps==2 and k in (0,5,6,7)): g.e(f"s_memrealtime s[{S_ST+2*k}:{S_ST+2*k+1}]")
def stamp2(g, o, k):
    if o.stamps==2: g.e(f"s_memrealtime s[{S_ST+2*k}:{S_ST+2*k+1}]")
def stamp_store(g, o):
    if not o.stamps: return
    g.e("s_waitcnt lgkmcnt(0)")
    g.e(f"s_lshl_b32 s{S_T0}, s2, 3")
    g.e(f"s_add_u32 s{S_T0}, s{S_T0}, s{S_WAVE}")
    g.e(f"s_lshl_b32 s{S_T0}, s{S_T0}, 5")
    g.e(f"s_add_u32 s{S_T0}, s{S_T0}, 0x400000")
    srd(g, SRD_A, S_WS, S_T0, 32)
    g.e("s_mov_b64 exec, 1")
    for k in range(8): g.e(f"v_mov_b32 v{40+k}, s{S_ST+2*k}")
    g.e("v_mov_b32 v48, 0")
    g.e(f"buffer_store_dwordx4 v[40:43], v48, s[{SRD_A}:{SRD_A+3}], 0 offen")
    g.e(f"buffer_store_dwordx4 v[44:47], v48, s[{SRD_A}:{SRD_A+3}], 0 offen offset:16")
    g.e("s_waitcnt vmcnt(0)")

def consumer_setup(g, o):
    if o.compact:
        g.e(f"s_lshl_b32 s{S_T0}, s2, 11")
        srd(g, SRD_W, S_WS, S_T0, 2048)
        g.e(f"s_lshr_b32 s{S_T0}, s2, 3")
        g.e(f"s_lshl_b32 s{S_T0}, s{S_T0}, 8")
        g.e(f"s_add_u32 s{S_T0}, s{S_T0}, {STATS_OFF}")
        srd(g, SRD_T, S_WS, S_T0, 256)
    else:
        g.e(f"s_lshl_b32 s{S_T0}, s2, 12")
        srd(g, SRD_W, S_WS, S_T0, 4096)
    g.e(f"s_lshl_b32 s{S_T0}, s2, 5")
    srd(g, SRD_O, S_OUT, S_T0, 32)
    g.e(f"v_lshrrev_b32 v8, 2, v{V_LANE}")
    g.e(f"v_and_b32 v9, 3, v{V_LANE}")
    if o.compact:
        g.e(f"v_lshlrev_b32 v10, 3, v8")
        g.e(f"v_lshlrev_b32 v11, 4, v{V_LANE}")
    else:
        g.e(f"v_lshlrev_b32 v10, 7, v8")
        g.e(f"v_lshl_add_u32 v11, v9, 4, v10")
    g.e(f"v_lshrrev_b32 v12, 4, v{V_LANE}")
    g.e(f"v_and_b32 v13, 1, v12")
    g.e(f"v_lshrrev_b32 v12, 1, v12")
    g.e(f"v_lshl_or_b32 v12, v13, 1, v12")
    g.e(f"v_lshl_add_u32 v12, v9, 2, v12")
    g.e(f"v_lshlrev_b32 v12, 1, v12")
    if o.outwarm and o.fused:
        g.e(f"buffer_load_ushort v14, v12, s[{SRD_O}:{SRD_O+3}], 0 offen")

def ready_total(g, src, dst):
    g.e(f"v_sad_u8 v{dst}, v{src}, 0, 0")
    g.e(f"v_sad_u8 v{dst}, v{src+1}, 0, v{dst}")
    g.e(f"v_sad_u8 v{dst}, v{src+2}, 0, v{dst}")

def consumer(g, fused, pfx, o, barrier=None):
    A=16; B=20; T0=24; T1=26; t=30
    g.c("---- combine 32 records, store 16 outputs ----")
    if fused:
        RD=o.V_RDY
        g.e(f"s_mov_b32 s{S_T2}, 0x40000")
        g.e(f"s_waitcnt vmcnt(0)")
        g.e(f"{pfx}_rdy:")
        ready_total(g, RD, 13)
        g.e(f"v_cmp_gt_u32 vcc, 32, v13")
        g.e(f"s_cbranch_vccz {pfx}_rdyok" if barrier else f"s_cbranch_vccz {pfx}_poll")
        g.e(f"s_sub_u32 s{S_T2}, s{S_T2}, 1")
        g.e(f"s_cbranch_scc1 {pfx}_rdyok" if barrier else f"s_cbranch_scc1 {pfx}_go")
        g.e(f"buffer_load_dwordx3 v[{RD}:{RD+2}], off, s[{SRD_D}:{SRD_D+3}], 0 sc1")
        g.e(f"s_waitcnt vmcnt(0)")
        g.e(f"s_branch {pfx}_rdy")
        if barrier:
            g.e(f"{pfx}_rdyok:")
            barrier()
    g.e(f"{pfx}_poll:")
    fl = "sc1" if fused else ""
    if o.compact:
        g.e(f"buffer_load_dwordx2 v[{T0}:{T0+1}], v10, s[{SRD_T}:{SRD_T+3}], 0 offen {fl}")
        g.e(f"buffer_load_dwordx2 v[{T1}:{T1+1}], v10, s[{SRD_T}:{SRD_T+3}], 0 offen offset:128 {fl}")
        g.e(f"buffer_load_dwordx4 v[{A}:{A+3}], v11, s[{SRD_W}:{SRD_W+3}], 0 offen {fl}")
        g.e(f"buffer_load_dwordx4 v[{B}:{B+3}], v11, s[{SRD_W}:{SRD_W+3}], 0 offen offset:1024 {fl}")
    else:
        g.e(f"buffer_load_dwordx4 v[{A}:{A+3}], v11, s[{SRD_W}:{SRD_W+3}], 0 offen {fl}")
        g.e(f"buffer_load_dwordx4 v[{B}:{B+3}], v11, s[{SRD_W}:{SRD_W+3}], 0 offen offset:2048 {fl}")
        g.e(f"buffer_load_dwordx2 v[{T0}:{T0+1}], v10, s[{SRD_W}:{SRD_W+3}], 0 offen offset:64 {fl}")
        g.e(f"buffer_load_dwordx2 v[{T1}:{T1+1}], v10, s[{SRD_W}:{SRD_W+3}], 0 offen offset:2112 {fl}")
    g.e("s_waitcnt vmcnt(0)")
    if fused:
        g.e(f"v_max3_u32 v{t}, v{A}, v{A+1}, v{A+2}")
        g.e(f"v_max3_u32 v{t+1}, v{A+3}, v{B}, v{B+1}")
        g.e(f"v_max3_u32 v{t}, v{t}, v{B+2}, v{B+3}")
        g.e(f"v_max3_u32 v{t+1}, v{t+1}, v{T0}, v{T0+1}")
        g.e(f"v_max3_u32 v{t}, v{t}, v{T1}, v{T1+1}")
        g.e(f"v_max_u32 v{t}, v{t}, v{t+1}")
        g.e(f"v_cmp_eq_u32 vcc, -1, v{t}")
        g.e(f"s_cbranch_vccz {pfx}_go")
        g.e(f"s_sub_u32 s{S_T2}, s{S_T2}, 1")
        g.e(f"s_cbranch_scc0 {pfx}_poll")
        g.e(f"{pfx}_go:")
        stamp(g,o,6)
    g.e(f"v_max_f32 v{t}, v{T0+1}, v{T1+1}")
    g.e("s_nop 1")
    g.e(f"v_max_f32_dpp v{t}, v{t}, v{t} row_ror:4 row_mask:0xf bank_mask:0xf")
    g.e("s_nop 1")
    g.e(f"v_max_f32_dpp v{t}, v{t}, v{t} row_ror:8 row_mask:0xf bank_mask:0xf")
    g.e(f"s_nop 0")
    g.e(f"v_mov_b32 v{t+1}, v{t}")
    g.e("s_nop 1")
    g.e(f"v_permlane16_swap_b32 v{t+1}, v{t}")
    g.e(f"v_max_f32 v{t}, v{t}, v{t+1}")
    g.e(f"v_mov_b32 v{t+1}, v{t}")
    g.e("s_nop 1")
    g.e(f"v_permlane32_swap_b32 v{t+1}, v{t}")
    g.e(f"v_max_f32 v{t}, v{t}, v{t+1}")
    g.e(f"v_sub_f32 v{T0+1}, v{T0+1}, v{t}")
    g.e(f"v_sub_f32 v{T1+1}, v{T1+1}, v{t}")
    g.e(f"v_exp_f32 v{T0+1}, v{T0+1}")
    g.e(f"v_exp_f32 v{T1+1}, v{T1+1}")
    g.e("s_nop 0")
    g.e(f"v_mul_f32 v{T0}, v{T0}, v{T0+1}")
    for e in range(4): g.e(f"v_mul_f32 v{A+e}, v{A+e}, v{T0+1}")
    g.e(f"v_fmac_f32 v{T0}, v{T1}, v{T1+1}")
    for e in range(4): g.e(f"v_fmac_f32 v{A+e}, v{B+e}, v{T1+1}")
    g.e(f"v_add_f32_dpp v{T0}, v{T0}, v{T0} row_ror:4 row_mask:0xf bank_mask:0xf")
    g.e("s_nop 0")
    g.e(f"v_permlane32_swap_b32 v{A}, v{A+1}")
    g.e(f"v_permlane32_swap_b32 v{A+2}, v{A+3}")
    g.e(f"v_add_f32_dpp v{T0}, v{T0}, v{T0} row_ror:8 row_mask:0xf bank_mask:0xf")
    g.e(f"v_add_f32 v{A}, v{A}, v{A+1}")
    g.e(f"v_add_f32 v{A+2}, v{A+2}, v{A+3}")
    g.e(f"v_mov_b32 v{t}, v{T0}")
    g.e("s_nop 1")
    g.e(f"v_permlane16_swap_b32 v{A}, v{A+2}")
    g.e(f"v_permlane16_swap_b32 v{t}, v{T0}")
    g.e(f"v_add_f32 v{A}, v{A}, v{A+2}")
    g.e(f"v_add_f32 v{T0}, v{T0}, v{t}")
    g.e("s_nop 0")
    g.e(f"v_mov_b32 v{t}, v{T0}")
    g.e(f"v_add_f32_dpp v{A}, v{A}, v{A} row_ror:4 row_mask:0xf bank_mask:0xf")
    g.e("s_nop 0")
    g.e(f"v_permlane32_swap_b32 v{t}, v{T0}")
    g.e(f"v_add_f32_dpp v{A}, v{A}, v{A} row_ror:8 row_mask:0xf bank_mask:0xf")
    g.e(f"v_add_f32 v{T0}, v{T0}, v{t}")
    g.e(f"v_rcp_f32 v{T0}, v{T0}")
    g.e("s_nop 0")
    g.e(f"v_mul_f32 v{A}, v{A}, v{T0}")
    g.e(f"v_cvt_pk_bf16_f32 v{A}, v{A}, v{A}")
    g.e(f"s_mov_b32 exec_lo, 0x000f000f")
    g.e(f"s_mov_b32 exec_hi, 0x000f000f")
    g.e(f"buffer_store_short v{A}, v12, s[{SRD_O}:{SRD_O+3}], 0 offen {o.outfl}")

def publish(g, o, data, n, addr, srd_, off, lbl):
    ins = f"buffer_store_dwordx{n} v[{data}:{data+n-1}], v{addr}, s[{srd_}:{srd_+3}], 0 offen offset:{off}"
    if o.fused and o.fast==1:
        g.e(f"s_cmp_eq_u32 s{S_FAST}, 1")
        g.e(f"s_cbranch_scc1 {lbl}_f")
        g.e(ins+" sc1")
        g.e(f"s_branch {lbl}_d")
        g.e(f"{lbl}_f:")
        g.e(ins)
        g.e(f"{lbl}_d:")
    elif o.fast==2:
        g.e(ins)
    else:
        g.e(ins+" sc1")

def ready_spin(g, o, pfx, tmp):
    RD=o.V_RDY
    g.e(f"s_mov_b32 s{S_T2}, 0x40000")
    g.e(f"{pfx}_rdy:")
    ready_total(g, RD, tmp)
    g.e(f"v_cmp_gt_u32 vcc, 32, v{tmp}")
    g.e(f"s_cbranch_vccz {pfx}_rdyok")
    g.e(f"s_sub_u32 s{S_T2}, s{S_T2}, 1")
    g.e(f"s_cbranch_scc1 {pfx}_rdyok")
    g.e(f"buffer_load_dwordx3 v[{RD}:{RD+2}], off, s[{SRD_D}:{SRD_D+3}], 0 sc1")
    g.e(f"s_waitcnt vmcnt(0)")
    g.e(f"s_branch {pfx}_rdy")
    g.e(f"{pfx}_rdyok:")

def early_tail(g, o, fast_calc, final_barrier):
    assert o.fused and o.compact
    g.c("---- tail roles ----")
    g.e(f"s_cmp_ge_u32 s{S_WAVE}, 4")
    g.e("s_cbranch_scc1 L_idle")
    g.e("s_waitcnt vmcnt(0) lgkmcnt(0)")
    g.e("s_barrier")
    ready_spin(g, o, "L_e", 13)
    fast_calc()
    g.e(f"s_cmp_eq_u32 s{S_WAVE}, 2")
    g.e("s_cbranch_scc1 L_stats")
    g.e(f"s_cmp_eq_u32 s{S_WAVE}, 3")
    g.e("s_cbranch_scc1 L_cons")
    g.e(f"s_lshl_b32 s{S_T0}, s{S_WAVE}, 6")
    g.e(f"v_add_u32 v1, s{S_T0}, v0")
    g.e(f"v_lshrrev_b32 v5, 5, v1")
    g.e(f"v_lshlrev_b32 v5, 5, v5")
    g.e(f"v_lshlrev_b32 v2, 4, v1")
    g.e(f"ds_read_b128 v[8:11], v5 offset:{LDS_M}")
    g.e(f"ds_read_b128 v[12:15], v5 offset:{LDS_M+16}")
    for w in range(4):
        g.e(f"ds_read_b128 v[{16+4*w}:{19+4*w}], v2 offset:{LDS_O+2048*w}")
    g.e(f"v_lshrrev_b32 v6, 2, v1")
    g.e(f"v_and_b32 v4, 3, v1")
    g.e(f"v_lshlrev_b32 v6, 11, v6")
    g.e(f"v_lshl_add_u32 v4, v4, 4, v6")
    g.e("s_waitcnt lgkmcnt(4)")
    g.e("v_max3_f32 v6, v8, v9, v10"); g.e("v_max3_f32 v7, v11, v12, v13"); g.e("v_max3_f32 v6, v6, v14, v15"); g.e("v_max_f32 v6, v6, v7")
    g.e(f"v_mul_f32 v6, s{S_C}, v6")
    for w in range(8): g.e(f"v_fma_f32 v{8+w}, v{8+w}, s{S_C}, -v6")
    for w in range(8): g.e(f"v_exp_f32 v{8+w}, v{8+w}")
    g.e("s_waitcnt lgkmcnt(0)")
    for e in range(4): g.e(f"v_mul_f32 v{16+e}, v{16+e}, v8")
    for w in range(1,4):
        for e in range(4): g.e(f"v_fmac_f32 v{16+e}, v{16+4*w+e}, v{8+w}")
    final_barrier()
    for w in range(4,8):
        g.e(f"ds_read_b128 v[{16+4*(w-3)}:{19+4*(w-3)}], v2 offset:{LDS_O+2048*w}")
    for w in range(4,8):
        g.e(f"s_waitcnt lgkmcnt({7-w})")
        for e in range(4): g.e(f"v_fmac_f32 v{16+e}, v{16+4*(w-3)+e}, v{8+w}")
    for e in range(4): g.e(f"v_min_u32 v{16+e}, -2, v{16+e}")
    publish(g,o,16,4,4,SRD_W,0,"L_po")
    stamp(g,o,6)
    if o.stamps: g.e("s_waitcnt vmcnt(0)")
    stamp(g,o,7); stamp_store(g,o)
    g.e("s_endpgm")
    g.e("L_stats:")
    g.e(f"v_and_b32 v1, 3, v0")
    g.e(f"v_lshlrev_b32 v4, 8, v1")
    g.e(f"v_lshlrev_b32 v2, 5, v1")
    g.e(f"v_lshlrev_b32 v3, {4 if o.shared else 2}, v1")
    g.e(f"ds_read_b128 v[24:27], v2 offset:{LDS_M}")
    g.e(f"ds_read_b128 v[28:31], v2 offset:{LDS_M+16}")
    g.e(f"ds_read_b128 v[16:19], v2 offset:{LDS_Lr}")
    g.e(f"ds_read_b128 v[20:23], v2 offset:{LDS_Lr+16}")
    if o.shared: g.e(f"ds_read_b128 v[32:35], v3 offset:{LDS_B}")
    else: g.e(f"ds_read_b32 v32, v3 offset:{LDS_B}")
    g.e("s_waitcnt lgkmcnt(3)")
    g.e("v_max3_f32 v6, v24, v25, v26"); g.e("v_max3_f32 v7, v27, v28, v29"); g.e("v_max3_f32 v6, v6, v30, v31"); g.e("v_max_f32 v6, v6, v7")
    g.e(f"v_mul_f32 v7, s{S_C}, v6")
    for w in range(8): g.e(f"v_fma_f32 v{24+w}, v{24+w}, s{S_C}, -v7")
    for w in range(8): g.e(f"v_exp_f32 v{24+w}, v{24+w}")
    g.e("s_waitcnt lgkmcnt(0)")
    if o.shared:
        g.e("v_add_f32 v32, v32, v33"); g.e("v_add_f32 v34, v34, v35"); g.e("v_add_f32 v32, v32, v34")
    g.e("v_sub_f32 v6, v6, v32")
    g.e("v_mul_f32 v16, v16, v24"); g.e("v_mul_f32 v18, v18, v26")
    g.e("v_fmac_f32 v16, v17, v25"); g.e("v_fmac_f32 v18, v19, v27")
    g.e("v_fmac_f32 v16, v20, v28"); g.e("v_fmac_f32 v18, v21, v29")
    g.e("v_fmac_f32 v16, v22, v30"); g.e("v_fmac_f32 v18, v23, v31")
    g.e(f"v_mul_f32 v17, s{S_C}, v6")
    g.e("v_add_f32 v16, v16, v18")
    g.e("v_min_u32 v17, -2, v17")
    g.e("v_min_u32 v16, -2, v16")
    g.e("s_mov_b64 exec, 15")
    publish(g,o,16,2,4,SRD_T,0,"L_ps")
    g.e("s_mov_b64 exec, -1")
    final_barrier()
    stamp(g,o,6); stamp(g,o,7); stamp_store(g,o)
    g.e("s_endpgm")
    g.e("L_cons:")
    consumer_setup(g,o)
    A=16; B=20; T0=24; T1=26; t=30
    if o.early==2: final_barrier()
    g.c("---- stage 1: maxima and sums of the 32 workgroups ----")
    g.e(f"s_mov_b32 s{S_T2}, 0x40000")
    g.e("L_c1:")
    g.e(f"buffer_load_dwordx2 v[{T0}:{T0+1}], v10, s[{SRD_T}:{SRD_T+3}], 0 offen sc1")
    g.e(f"buffer_load_dwordx2 v[{T1}:{T1+1}], v10, s[{SRD_T}:{SRD_T+3}], 0 offen offset:128 sc1")
    g.e("s_waitcnt vmcnt(0)")
    g.e(f"v_max3_u32 v{t}, v{T0}, v{T0+1}, v{T1}")
    g.e(f"v_max_u32 v{t}, v{t}, v{T1+1}")
    g.e(f"v_cmp_eq_u32 vcc, -1, v{t}")
    g.e("s_cbranch_vccz L_c1ok")
    g.e(f"s_sub_u32 s{S_T2}, s{S_T2}, 1")
    g.e("s_cbranch_scc0 L_c1")
    g.e("L_c1ok:")
    g.e(f"v_max_f32 v{t}, v{T0+1}, v{T1+1}")
    g.e("s_nop 1")
    g.e(f"v_max_f32_dpp v{t}, v{t}, v{t} row_ror:4 row_mask:0xf bank_mask:0xf")
    g.e("s_nop 1")
    g.e(f"v_max_f32_dpp v{t}, v{t}, v{t} row_ror:8 row_mask:0xf bank_mask:0xf")
    g.e(f"s_nop 0")
    g.e(f"v_mov_b32 v{t+1}, v{t}")
    g.e("s_nop 1")
    g.e(f"v_permlane16_swap_b32 v{t+1}, v{t}")
    g.e(f"v_max_f32 v{t}, v{t}, v{t+1}")
    g.e(f"v_mov_b32 v{t+1}, v{t}")
    g.e("s_nop 1")
    g.e(f"v_permlane32_swap_b32 v{t+1}, v{t}")
    g.e(f"v_max_f32 v{t}, v{t}, v{t+1}")
    g.e(f"v_sub_f32 v{T0+1}, v{T0+1}, v{t}")
    g.e(f"v_sub_f32 v{T1+1}, v{T1+1}, v{t}")
    g.e(f"v_exp_f32 v{T0+1}, v{T0+1}")
    g.e(f"v_exp_f32 v{T1+1}, v{T1+1}")
    g.e("s_nop 0")
    g.e(f"v_mul_f32 v{T0}, v{T0}, v{T0+1}")
    g.e(f"v_fmac_f32 v{T0}, v{T1}, v{T1+1}")
    g.e("s_nop 1")
    g.e(f"v_add_f32_dpp v{T0}, v{T0}, v{T0} row_ror:4 row_mask:0xf bank_mask:0xf")
    g.e("s_nop 1")
    g.e(f"v_add_f32_dpp v{T0}, v{T0}, v{T0} row_ror:8 row_mask:0xf bank_mask:0xf")
    g.e(f"s_nop 0")
    g.e(f"v_mov_b32 v{t}, v{T0}")
    g.e("s_nop 1")
    g.e(f"v_permlane16_swap_b32 v{t}, v{T0}")
    g.e(f"v_add_f32 v{T0}, v{T0}, v{t}")
    g.e(f"v_mov_b32 v{t}, v{T0}")
    g.e("s_nop 1")
    g.e(f"v_permlane32_swap_b32 v{t}, v{T0}")
    g.e(f"v_add_f32 v{T0}, v{T0}, v{t}")
    g.e(f"v_rcp_f32 v{T0}, v{T0}")
    g.e("s_nop 0")
    g.e(f"v_mul_f32 v{T0+1}, v{T0+1}, v{T0}")
    g.e(f"v_mul_f32 v{T1+1}, v{T1+1}, v{T0}")
    g.e(f"s_mov_b32 s{S_T2}, 0x40000")
    if o.early==1: final_barrier()
    g.c("---- stage 2: the 32 partial outputs ----")
    g.e("L_c2:")
    g.e(f"buffer_load_dwordx4 v[{A}:{A+3}], v11, s[{SRD_W}:{SRD_W+3}], 0 offen sc1")
    g.e(f"buffer_load_dwordx4 v[{B}:{B+3}], v11, s[{SRD_W}:{SRD_W+3}], 0 offen offset:1024 sc1")
    g.e("s_waitcnt vmcnt(0)")
    g.e(f"v_max3_u32 v{t}, v{A}, v{A+1}, v{A+2}")
    g.e(f"v_max3_u32 v{t+1}, v{B}, v{B+1}, v{B+2}")
    g.e(f"v_max3_u32 v{t}, v{t}, v{A+3}, v{B+3}")
    g.e(f"v_max_u32 v{t}, v{t}, v{t+1}")
    g.e(f"v_cmp_eq_u32 vcc, -1, v{t}")
    g.e("s_cbranch_vccz L_c2ok")
    g.e(f"s_sub_u32 s{S_T2}, s{S_T2}, 1")
    g.e("s_cbranch_scc0 L_c2")
    g.e("L_c2ok:")
    stamp(g,o,6)
    for e in range(4): g.e(f"v_mul_f32 v{A+e}, v{A+e}, v{T0+1}")
    for e in range(4): g.e(f"v_fmac_f32 v{A+e}, v{B+e}, v{T1+1}")
    g.e("s_nop 0")
    g.e(f"v_permlane32_swap_b32 v{A}, v{A+1}")
    g.e(f"v_permlane32_swap_b32 v{A+2}, v{A+3}")
    g.e(f"v_add_f32 v{A}, v{A}, v{A+1}")
    g.e(f"v_add_f32 v{A+2}, v{A+2}, v{A+3}")
    g.e("s_nop 1")
    g.e(f"v_permlane16_swap_b32 v{A}, v{A+2}")
    g.e(f"v_add_f32 v{A}, v{A}, v{A+2}")
    g.e("s_nop 1")
    g.e(f"v_add_f32_dpp v{A}, v{A}, v{A} row_ror:4 row_mask:0xf bank_mask:0xf")
    g.e("s_nop 1")
    g.e(f"v_add_f32_dpp v{A}, v{A}, v{A} row_ror:8 row_mask:0xf bank_mask:0xf")
    g.e(f"s_mov_b32 exec_lo, 0x000f000f")
    g.e(f"s_mov_b32 exec_hi, 0x000f000f")
    g.e(f"v_cvt_pk_bf16_f32 v{A}, v{A}, v{A}")
    g.e(f"buffer_store_short v{A}, v12, s[{SRD_O}:{SRD_O+3}], 0 offen {o.outfl}")
    if o.stamps: g.e("s_waitcnt vmcnt(0)")
    stamp(g,o,7); stamp_store(g,o)
    g.e("s_endpgm")
    g.e("L_idle:")
    final_barrier()
    stamp(g,o,6); stamp(g,o,7); stamp_store(g,o)
    g.e("L_end:")
    g.e("s_endpgm")

def main_kernel(g, o):
    fused = o.fused
    NS = o.nslots
    ldf = o.ldflags
    kernel_begin(g, o.main_name)
    g.e("s_cmp_ge_u32 s2, 256")
    g.e("s_cbranch_scc1 L_end")
    stamp(g,o,0)
    if o.prio: g.e(f"s_setprio {o.prio}")
    g.e(f"s_load_dwordx16 s[4:19], s[0:1], 0")
    g.e(f"s_load_dwordx4 s[20:23], s[0:1], 64")
    if o.xmap:
        g.e("s_and_b32 s3, s2, 7"); g.e("s_lshl_b32 s3, s3, 5"); g.e("s_lshr_b32 s2, s2, 3"); g.e("s_add_u32 s2, s2, s3")
    g.e(f"v_lshrrev_b32 v1, 6, v0")
    g.e(f"v_and_b32 v0, 63, v0")
    g.e(f"v_readfirstlane_b32 s{S_WAVE}, v1")
    g.e("v_bfe_u32 v3, v0, 2, 1")
    g.e("v_and_b32 v4, 3, v0")
    g.e(f"v_lshlrev_b32 v{V_K}, 12, v3")
    g.e(f"v_lshl_add_u32 v{V_K}, v4, 9, v{V_K}")
    g.e("v_lshrrev_b32 v3, 3, v0")
    g.e(f"v_lshl_add_u32 v{V_K}, v3, 4, v{V_K}")
    g.e(f"s_lshl_b32 s{S_T0}, s2, 9")
    g.e(f"s_lshl_b32 s{S_T1}, s{S_WAVE}, 6")
    g.e(f"s_add_u32 s{S_T0}, s{S_T0}, s{S_T1}")
    g.e(f"s_lshl_b32 s{S_T1}, s{S_T0}, 9")
    g.e(f"s_lshl_b32 s{S_T2}, s{S_T0}, 1")
    g.e(f"s_mov_b32 s{S_8192}, 8192")
    g.e(f"s_mov_b32 s{S_16384}, 16384")
    g.e(f"s_mov_b32 s{S_24576}, 24576")
    g.e("v_lshrrev_b32 v3, 4, v0")
    g.e(f"v_and_b32 v{X}, 15, v0")
    g.e(f"v_lshlrev_b32 v{V_V}, 12, v3")
    g.e(f"v_lshl_add_u32 v{V_V}, v{X}, 4, v{V_V}")
    g.e(f"v_lshlrev_b32 v{X+1}, 4, v3")
    g.e(f"v_lshl_add_u32 v{X+2}, v4, 8, v{X+1}")
    g.e(f"v_bfe_i32 v{V_M1}, v0, 2, 1")
    g.e(f"v_and_b32 v{V_M1}, 0xffff0000, v{V_M1}")
    g.e(f"s_lshr_b32 s{S_HK}, s2, 5")
    g.e(f"s_and_b32 s{S_SPLIT}, s2, 31")
    g.e(f"s_mov_b32 s{S_HI}, 0xffff0000")
    g.e(f"s_mov_b32 s{S_C}, 0x{f2u(CEXP):08x}")
    g.e(f"s_mov_b32 s{S_PERM}, 0x07060302")
    g.e(f"s_mov_b32 s{S_NEG}, 0x80008000")
    if fused:
        g.e(f"s_getreg_b32 s{S_XCC}, hwreg(HW_REG_XCC_ID, 0, 4)")
        g.e(f"s_min_u32 s{S_XCC}, s{S_XCC}, 8")
    g.e("s_waitcnt lgkmcnt(0)")
    stamp2(g,o,1)
    srd(g, SRD_K, S_QK, S_T1, 32768)

    loads = []
    sok = {0:"0",8192:f"s{S_8192}",16384:f"s{S_16384}",24576:f"s{S_24576}"}
    for up in range(4):
        it = [(j,u) for j in range(4) for u in range(2)] if o.korder=="ju" else [(j,u) for u in range(2) for j in range(4)]
        for (j,u) in it:
            loads.append((("K",up,j,u), f"v{V_K}, s[{SRD_K}:{SRD_K+3}], {sok[16384*(up>>1)+8192*u]} offen offset:{2048*(up&1)+128*j}"))
    units = [(0,0),(0,1),(1,0),(1,1)] if o.vunits=="w" else [(0,0),(1,0),(0,1),(1,1)]
    for (wp,half) in units:
        for s_ in range(8):
            loads.append((("V",wp,half,s_), f"v{V_V}, s[{SRD_V}:{SRD_V+3}], {sok[16384*wp]} offen offset:{512*s_+256*half}"))
    slot_of = {}
    free = [RING+4*i for i in range(NS)]
    state = {"next":0}
    def issue(n=1):
        k=0
        for _ in range(n):
            i = state["next"]
            if i >= len(loads) or not free: break
            tag, rest = loads[i]
            slot = free.pop(0)
            slot_of[tag] = slot
            g.vmem(f"buffer_load_dwordx4 v[{slot}:{slot+3}], {rest} {ldf}", tag)
            state["next"] += 1; k+=1
        return k
    def release(*tags):
        for t_ in tags: free.append(slot_of[t_])

    def abc_srds():
        g.e(f"s_lshl_b32 s{S_T0}, s{S_HK}, 10")
        srd(g, SRD_A, S_Q, S_T0, 1024)
        g.e(f"s_lshr_b32 s{S_T0}, s2, 4")
        g.e(f"s_lshl_b32 s{S_T0}, s{S_T0}, 8")
        srd(g, SRD_B, S_KS, S_T0, 256)
        srd(g, SRD_C, S_KZ, S_T0, 256)
    def rec_srds():
        if o.compact:
            g.e(f"s_lshl_b32 s{S_XS}, s{S_HK}, 16")
            g.e(f"s_lshl_b32 s{S_XT}, s{S_SPLIT}, 6")
            g.e(f"s_add_u32 s{S_XS}, s{S_XS}, s{S_XT}")
            srd(g, SRD_W, S_WS, S_XS, 31*2048+64)
            g.e(f"s_lshl_b32 s{S_XS}, s{S_HK}, 10")
            g.e(f"s_lshl_b32 s{S_XT}, s{S_SPLIT}, 3")
            g.e(f"s_add_u32 s{S_XS}, s{S_XS}, s{S_XT}")
            g.e(f"s_add_u32 s{S_XS}, s{S_XS}, {STATS_OFF}")
            srd(g, SRD_T, S_WS, S_XS, 3*256+8)
        else:
            g.e(f"s_lshl_b32 s{S_XS}, s{S_HK}, 17")
            g.e(f"s_lshl_b32 s{S_XT}, s{S_SPLIT}, 7")
            g.e(f"s_add_u32 s{S_XS}, s{S_XS}, s{S_XT}")
            srd(g, SRD_W, S_WS, S_XS, 31*4096+128)
    def other_srds():
        srd(g, SRD_V, S_QV, S_T1, 32768)
        if not o.shared:
            srd(g, SRD_VS, S_VS, S_T2, 128)
            srd(g, SRD_VZ, S_VZ, S_T2, 128)
            abc_srds()
        rec_srds()
        if fused:
            g.e(f"s_lshl_b32 s{S_T0}, s{S_HK}, 5")
            srd(g, SRD_D, S_DBG, S_T0, 12)
    def clear(part=3):
        if "noclear" in o.dbg: return
        g.e(f"s_cmp_eq_u32 s{S_WAVE}, {o.clearwave}")
        g.e(f"s_cbranch_scc0 L_noclear{part}")
        if part & 1: clear_stores()
        if part & 2: clear_count()
        g.e(f"L_noclear{part}:")
    def clear_stores():
        if o.inbox:
            for k in range(4): g.e(f"v_mov_b32 v{R+k}, -1")
            g.e(f"s_lshl_b32 s{S_T0}, s2, 11")
            srd(g, SRD_O, S_WS, S_T0, 2048)
            g.e(f"v_lshlrev_b32 v{X+4}, 4, v0")
            g.e(f"buffer_store_dwordx4 v[{R}:{R+3}], v{X+4}, s[{SRD_O}:{SRD_O+3}], 0 offen sc1")
            g.e(f"buffer_store_dwordx4 v[{R}:{R+3}], v{X+4}, s[{SRD_O}:{SRD_O+3}], 0 offen offset:1024 sc1")
            g.e(f"s_and_b32 s{S_T0}, s2, 7")
            g.e(f"s_cmp_eq_u32 s{S_T0}, 0")
            g.e("s_cbranch_scc0 L_nostatclr")
            g.e(f"s_lshr_b32 s{S_T0}, s2, 3")
            g.e(f"s_lshl_b32 s{S_T0}, s{S_T0}, 8")
            g.e(f"s_add_u32 s{S_T0}, s{S_T0}, {STATS_OFF}")
            srd(g, SRD_O, S_WS, S_T0, 256)
            g.e(f"buffer_store_dwordx4 v[{R}:{R+3}], v{X+4}, s[{SRD_O}:{SRD_O+3}], 0 offen sc1")
            g.e("L_nostatclr:")
        else:
            for k in range(4): g.e(f"v_mov_b32 v{R+k}, -1")
            sh = 11 if o.compact else 12
            g.e(f"v_lshrrev_b32 v{X+4}, 2, v0")
            g.e(f"v_and_b32 v{X+5}, 3, v0")
            g.e(f"v_lshlrev_b32 v{X+4}, {sh}, v{X+4}")
            g.e(f"v_lshl_add_u32 v{X+4}, v{X+5}, 4, v{X+4}")
            g.e(f"s_mov_b32 s{S_T0}, {16<<sh}")
            g.e(f"buffer_store_dwordx4 v[{R}:{R+3}], v{X+4}, s[{SRD_W}:{SRD_W+3}], 0 offen sc1")
            g.e(f"buffer_store_dwordx4 v[{R}:{R+3}], v{X+4}, s[{SRD_W}:{SRD_W+3}], s{S_T0} offen sc1")
            if o.compact:
                g.e(f"v_lshlrev_b32 v{X+5}, 8, v{X+5}")
                g.e(f"buffer_store_dwordx2 v[{R}:{R+1}], v{X+5}, s[{SRD_T}:{SRD_T+3}], 0 offen sc1")
            else:
                g.e(f"v_and_b32 v{X+5}, 31, v0")
                g.e(f"v_lshlrev_b32 v{X+5}, 12, v{X+5}")
                g.e(f"buffer_store_dwordx4 v[{R}:{R+3}], v{X+5}, s[{SRD_W}:{SRD_W+3}], 0 offen offset:64 sc1")
    def clear_count():
        g.e(f"s_and_b32 s{S_T0}, s{S_XCC}, 3")
        g.e(f"s_lshl_b32 s{S_T0}, s{S_T0}, 3")
        g.e(f"s_lshl_b32 s{S_T0}, 1, s{S_T0}")
        g.e(f"s_lshr_b32 s{S_T1}, s{S_XCC}, 2")
        g.e(f"s_lshl_b32 s{S_T1}, s{S_T1}, 2")
        g.e(f"v_mov_b32 v{X+6}, s{S_T0}")
        if "plainclear" in o.dbg:
            for i in range(len(g.L)-1, len(g.L)-30, -1):
                if g.L[i].startswith("buffer_store") and g.L[i].endswith(" sc1"): g.L[i]=g.L[i][:-4]
        g.e("s_waitcnt vmcnt(0)")
        g.e(f"s_mov_b64 exec, 1")
        g.e(f"buffer_atomic_add v{X+6}, off, s[{SRD_D}:{SRD_D+3}], s{S_T1} sc1")
        g.e(f"s_mov_b64 exec, -1")
    QR=ACC; KSR=ACC+16; KZR=S
    def vs_loads():
        for k in range(2):
            g.vmem(f"buffer_load_dwordx4 v[{VS+4*k}:{VS+4*k+3}], v{X+1}, s[{SRD_VS}:{SRD_VS+3}], 0 offen offset:{64*k} {o.vsnt}", "vs")
            g.vmem(f"buffer_load_dwordx4 v[{VZ+4*k}:{VZ+4*k+3}], v{X+1}, s[{SRD_VZ}:{SRD_VZ+3}], 0 offen offset:{64*k} {o.vsnt}", "vz")
    def small_loads():
        if "nosmall" in o.dbg: return
        for j in range(4):
            g.vmem(f"buffer_load_dwordx4 v[{QR+4*j}:{QR+4*j+3}], v{X+2}, s[{SRD_A}:{SRD_A+3}], 0 offen offset:{64*j}", "q")
            g.vmem(f"buffer_load_dwordx4 v[{KSR+4*j}:{KSR+4*j+3}], v{X+1}, s[{SRD_B}:{SRD_B+3}], 0 offen offset:{64*j}", f"ks{j}")
        for j in range(4):
            g.vmem(f"buffer_load_dwordx4 v[{KZR+4*j}:{KZR+4*j+3}], v{X+1}, s[{SRD_C}:{SRD_C+3}], 0 offen offset:{64*j}", "kz")
        if o.vsearly: vs_loads()
    def qprime(qreg, ksreg, dst):
        for i in range(0,4,2):
            for k in range(2):
                q=qreg+i+k; ks=ksreg+i+k; t=X+4*k
                g.e(f"v_lshlrev_b32 v{t}, 16, v{q}")
                g.e(f"v_and_b32 v{t+1}, s{S_HI}, v{q}")
                g.e(f"v_lshlrev_b32 v{t+2}, 16, v{ks}")
                g.e(f"v_and_b32 v{t+3}, s{S_HI}, v{ks}")
            for k in range(2):
                t=X+4*k
                g.e(f"v_mul_f32 v{t}, v{t}, v{t+2}")
                g.e(f"v_mul_f32 v{t+1}, v{t+1}, v{t+3}")
            for k in range(2):
                t=X+4*k
                g.e(f"v_and_b32 v{t+2}, v{V_M1}, v{t}")
                g.e(f"v_and_b32 v{t+3}, v{V_M1}, v{t+1}")
            for k in range(2):
                t=X+4*k
                g.e(f"v_sub_f32 v{t}, v{t}, v{t+2}")
                g.e(f"v_sub_f32 v{t+1}, v{t+1}, v{t+3}")
            for k in range(2):
                t=X+4*k
                g.e(f"v_perm_b32 v{dst+i+k}, v{t+1}, v{t}, s{S_PERM}")
    if o.shared:
        issue(o.kpre)
        g.e(f"s_cmp_ge_u32 s{S_WAVE}, 4")
        g.e("s_cbranch_scc1 L_nosmall")
        abc_srds()
        g.e(f"s_lshl_b32 s{S_T0}, s{S_WAVE}, 6")
        g.e(f"buffer_load_dwordx4 v[{ACC}:{ACC+3}], v{X+2}, s[{SRD_A}:{SRD_A+3}], s{S_T0} offen")
        g.e(f"buffer_load_dwordx4 v[{ACC+4}:{ACC+7}], v{X+1}, s[{SRD_B}:{SRD_B+3}], s{S_T0} offen")
        g.e(f"buffer_load_dwordx4 v[{ACC+8}:{ACC+11}], v{X+1}, s[{SRD_C}:{SRD_C+3}], s{S_T0} offen")
        g.e(f"s_cmp_eq_u32 s{S_WAVE}, 0")
        g.e("s_cbranch_scc0 L_nosmall")
        g.e(f"s_lshl_b32 s{S_T0}, s2, 10")
        srd(g, SRD_VS, S_VS, S_T0, 1024)
        srd(g, SRD_VZ, S_VZ, S_T0, 1024)
        g.e(f"v_lshlrev_b32 v{X+3}, 4, v0")
        g.e(f"buffer_load_dwordx4 v[{ACC+12}:{ACC+15}], v{X+3}, s[{SRD_VS}:{SRD_VS+3}], 0 offen")
        g.e(f"buffer_load_dwordx4 v[{ACC+16}:{ACC+19}], v{X+3}, s[{SRD_VZ}:{SRD_VZ+3}], 0 offen")
        g.e("L_nosmall:")
        other_srds()
        issue(32-o.kpre)
        stamp(g,o,1)
        g.e(f"s_cmp_ge_u32 s{S_WAVE}, 4")
        g.e("s_cbranch_scc1 L_bar0")
        g.e(f"v_lshlrev_b32 v{V_T0}, 4, v0")
        g.e(f"s_lshl_b32 s{S_T0}, s{S_WAVE}, 10")
        g.e(f"v_add_u32 v{V_T1}, s{S_T0}, v{V_T0}")
        g.e(f"s_waitcnt vmcnt({32-o.kpre})")
        qprime(ACC, ACC+4, QP)
        g.e(f"v_and_b32 v{X}, 3, v0")
        g.e(f"s_lshl_b32 s{S_T0}, s{S_WAVE}, 2")
        g.e(f"v_mfma_f32_16x16x32_bf16 v[{CACC}:{CACC+3}], v[{ACC+8}:{ACC+11}], v[{QP}:{QP+3}], 0")
        g.e(f"ds_write_b128 v{V_T1}, v[{QP}:{QP+3}] offset:{LDS_Q}")
        g.e(f"v_lshl_add_u32 v{X}, v{X}, 4, s{S_T0}")
        g.e(f"s_cmp_eq_u32 s{S_WAVE}, 0")
        g.e("s_cbranch_scc0 L_novs")
        g.e(f"ds_write_b128 v{V_T0}, v[{ACC+12}:{ACC+15}] offset:{LDS_VS}")
        g.e(f"ds_write_b128 v{V_T0}, v[{ACC+16}:{ACC+19}] offset:{LDS_VZ}")
        g.e("L_novs:")
        g.e("s_nop 7")
        g.e(f"v_add_f32_dpp v{V_BIAS}, v{CACC}, v{CACC} row_ror:4 row_mask:0xf bank_mask:0xf")
        g.e("s_mov_b64 exec, 15")
        g.e(f"ds_write_b32 v{X}, v{V_BIAS} offset:{LDS_B}")
        g.e("s_mov_b64 exec, -1")
        if fused: clear()
        g.e("s_waitcnt lgkmcnt(0)")
        g.e("L_bar0:")
    elif o.kfirst:
        if fused and o.clearpos=="first":
            other_srds(); clear(); issue(32)
        else:
            issue(8); other_srds(); issue(24)
            if fused: clear_after=True
        if o.tlbw:
            g.vmem(f"buffer_load_dword v{X+7}, off, s[{SRD_V}:{SRD_V+3}], 0 {ldf}", "tlb")
        small_loads()
        if fused and o.clearpos=="split": clear(2)
        elif fused and o.clearpos!="first": clear()
    else:
        if fused and o.clearpos=="split":
            g.e(f"s_cmp_eq_u32 s{S_WAVE}, {o.clearwave}")
            g.e("s_cbranch_scc0 L_nopre")
            rec_srds()
            clear_stores()
            g.e("L_nopre:")
        issue(o.kpre)
        stamp2(g,o,2)
        other_srds()
        if fused and o.clearpos=="first": clear()
        if o.tlbw:
            g.vmem(f"buffer_load_dword v{X+7}, off, s[{SRD_V}:{SRD_V+3}], 0 {ldf}", "tlb")
        small_loads()
        stamp2(g,o,3)
        issue(32-o.kpre)
        if o.prio and not o.prioclear: g.e("s_setprio 0")
        stamp2(g,o,4)
        if fused and o.clearpos=="split": clear(2)
        elif fused and o.clearpos!="first": clear()
        if o.prio and o.prioclear: g.e("s_setprio 0")
    if not o.shared: stamp(g,o,1)
    if (o.bar0 or o.shared) and "nobar" not in o.dbg: g.e("s_barrier")
    if o.shared:
        g.e(f"v_lshlrev_b32 v{V_T0}, 4, v0")
        g.e(f"s_lshl_b32 s{S_T0}, s{S_WAVE}, 7")
        g.e(f"v_and_b32 v{V_T1}, 0x30, v0")
        g.e(f"v_add_u32 v{V_T1}, s{S_T0}, v{V_T1}")
        for j in range(4): g.e(f"ds_read_b128 v[{QP+4*j}:{QP+4*j+3}], v{V_T0} offset:{LDS_Q+1024*j}")
        for k in range(2):
            g.e(f"ds_read_b128 v[{VS+4*k}:{VS+4*k+3}], v{V_T1} offset:{LDS_VS+64*k}")
            g.e(f"ds_read_b128 v[{VZ+4*k}:{VZ+4*k+3}], v{V_T1} offset:{LDS_VZ+64*k}")
        issue(NS-32)
        g.e("s_waitcnt lgkmcnt(0)")
    else:
        if not o.vsearly: vs_loads()
        issue(NS-32)
        g.c("---- q' ----")
        for j in range(4):
            g.wait(f"ks{j}")
            qprime(QR+4*j, KSR+4*j, QP+4*j)
        g.c("---- bias = q'.kz ----")
        if not g.wait("kz"): g.e("s_nop 1")
        for j in range(4):
            c = "0" if j==0 else f"v[{CACC}:{CACC+3}]"
            g.e(f"v_mfma_f32_16x16x32_bf16 v[{CACC}:{CACC+3}], v[{KZR+4*j}:{KZR+4*j+3}], v[{QP+4*j}:{QP+4*j+3}], {c}")
    stamp(g,o,2)
    g.c("---- QK ----")
    first=True
    for up in range(4):
        for j in range(4):
            g.wait(("K",up,j,1) if o.korder=="ju" else ("K",up,j,1))
            a=slot_of[("K",up,j,0)]; b=slot_of[("K",up,j,1)]
            for e in range(4): g.e(f"v_cvt_f32_i32 v{X+e}, v{a+e}")
            for e in range(4): g.e(f"v_cvt_f32_i32 v{X+4+e}, v{b+e}")
            for e in range(4): g.e(f"v_cvt_f32_i32_dpp v{X+e}, v{b+e} row_ror:8 row_mask:0xf bank_mask:0xc")
            for e in range(4): g.e(f"v_cvt_f32_i32_dpp v{X+4+e}, v{a+e} row_ror:8 row_mask:0xf bank_mask:0x3")
            if first and not o.shared:
                g.e(f"v_add_f32_dpp v{V_BIAS}, v{CACC}, v{CACC} row_ror:4 row_mask:0xf bank_mask:0xf")
            first=False
            for k in range(4): g.e(f"v_cvt_pk_bf16_f32 v{R+k}, v{X+2*k}, v{X+2*k+1}")
            release(("K",up,j,0),("K",up,j,1))
            k_=issue(2)
            if k_ < 2: g.e("s_nop 1")
            c = "0" if j==0 else f"v[{S+4*up}:{S+4*up+3}]"
            g.e(f"v_mfma_f32_16x16x32_bf16 v[{S+4*up}:{S+4*up+3}], v[{R}:{R+3}], v[{QP+4*j}:{QP+4*j+3}], {c}")
    issue(100)
    assert state["next"]==len(loads)
    if fused:
        o.V_RDY = free.pop(0)
        if o.rdylate:
            pass
        elif o.rdy4:
            g.e(f"s_cmp_lt_u32 s{S_WAVE}, 4")
            g.e("s_cbranch_scc0 L_nordy")
            g.e(f"buffer_load_dwordx3 v[{o.V_RDY}:{o.V_RDY+2}], off, s[{SRD_D}:{SRD_D+3}], 0 sc1")
            g.e("L_nordy:")
        else:
            g.e(f"buffer_load_dwordx3 v[{o.V_RDY}:{o.V_RDY+2}], off, s[{SRD_D}:{SRD_D+3}], 0 sc1")
            g.vm.append("rdy")
    stamp(g,o,3)
    g.c("---- max ----")
    g.e("s_nop 6" if (fused and not o.rdylate) else "s_nop 7")
    for i in range(16):
        g.e(f"v_add_f32_dpp v{S+i}, v{S+i}, v{S+i} row_ror:4 row_mask:0xf bank_mask:0xf")
    m=V_T0; t=V_T1
    g.e(f"v_max3_f32 v{m}, v{S}, v{S+1}, v{S+2}")
    g.e(f"v_max3_f32 v{t}, v{S+3}, v{S+4}, v{S+5}")
    g.e(f"v_max3_f32 v{m}, v{m}, v{S+6}, v{S+7}")
    g.e(f"v_max3_f32 v{t}, v{t}, v{S+8}, v{S+9}")
    g.e(f"v_max3_f32 v{m}, v{m}, v{S+10}, v{S+11}")
    g.e(f"v_max3_f32 v{t}, v{t}, v{S+12}, v{S+13}")
    g.e(f"v_max3_f32 v{m}, v{m}, v{S+14}, v{S+15}")
    g.e(f"v_max_f32 v{m}, v{m}, v{t}")
    def xreduce(op, m, t):
        g.e(f"v_mov_b32 v{t}, v{m}"); g.e("s_nop 1")
        g.e(f"v_permlane16_swap_b32 v{t}, v{m}")
        g.e(f"{op} v{m}, v{m}, v{t}")
        g.e(f"v_mov_b32 v{t}, v{m}"); g.e("s_nop 1")
        g.e(f"v_permlane32_swap_b32 v{t}, v{m}")
        g.e(f"{op} v{m}, v{m}, v{t}")
    xreduce("v_max_f32", m, t)
    g.e(f"v_and_b32 v{X+2}, 3, v0")
    g.e(f"v_lshlrev_b32 v{X+1}, 5, v{X+2}")
    g.e(f"s_lshl_b32 s{S_T0}, s{S_WAVE}, 2")
    g.e(f"v_add_u32 v{X+1}, s{S_T0}, v{X+1}")
    g.e(f"v_lshlrev_b32 v{X+2}, 2, v{X+2}")
    g.e("s_mov_b64 exec, 15")
    g.e(f"ds_write_b32 v{X+1}, v{m} offset:{LDS_M}")
    if not o.shared: g.e(f"ds_write_b32 v{X+2}, v{V_BIAS} offset:{LDS_B}")
    g.e("s_mov_b64 exec, -1")
    g.e(f"v_mov_b32 v{V_BIAS}, v{X+1}")
    if not o.shared: g.wait("vz")
    for k in range(8): g.e(f"v_xor_b32 v{VZ+k}, s{S_NEG}, v{VZ+k}")
    g.e(f"v_mul_f32 v{m}, s{S_C}, v{m}")
    g.c("---- softmax numerators ----")
    PA=QP
    for i0 in range(0,16,4):
        for i in range(i0,i0+4): g.e(f"v_fma_f32 v{S+i}, v{S+i}, s{S_C}, -v{m}")
        for i in range(i0,i0+4): g.e(f"v_exp_f32 v{S+i}, v{S+i}")
        for i in range(i0,i0+4):
            src=VS+(i>>1)
            if i&1: g.e(f"v_and_b32 v{X+i-i0}, s{S_HI}, v{src}")
            else:   g.e(f"v_lshlrev_b32 v{X+i-i0}, 16, v{src}")
        for i in range(i0,i0+4):
            if i==0: g.e(f"v_mov_b32 v{V_L}, v{S}")
            else:    g.e(f"v_add_f32 v{V_L}, v{V_L}, v{S+i}")
        for i in range(i0,i0+4): g.e(f"v_mul_f32 v{S+i}, v{S+i}, v{X+i-i0}")
        for i in range(i0,i0+4): g.e(f"v_and_b32 v{X+4+i-i0}, v{V_M1}, v{S+i}")
        for i in range(i0,i0+4): g.e(f"v_sub_f32 v{S+i}, v{S+i}, v{X+4+i-i0}")
        for i in range(i0,i0+4,2): g.e(f"v_perm_b32 v{PA+(i>>1)}, v{S+i+1}, v{S+i}, s{S_PERM}")
    xreduce("v_add_f32", V_L, t)
    g.e(f"v_mfma_f32_16x16x32_bf16 v[{CACC}:{CACC+3}], v[{PA}:{PA+3}], v[{VZ}:{VZ+3}], 0")
    g.e(f"v_mfma_f32_16x16x32_bf16 v[{CACC}:{CACC+3}], v[{PA+4}:{PA+7}], v[{VZ+4}:{VZ+7}], v[{CACC}:{CACC+3}]")
    g.e("s_mov_b64 exec, 15")
    g.e(f"ds_write_b32 v{V_BIAS}, v{V_L} offset:{LDS_Lr}")
    g.e("s_mov_b64 exec, -1")
    def bar1():
        g.e(f"s_cmp_lt_u32 s{S_WAVE}, 4")
        g.e("s_cbranch_scc1 L_nobar1")
        g.e("s_waitcnt lgkmcnt(0)")
        g.e("s_barrier")
        g.e("L_nobar1:")
    if o.early and o.bar1pos<0: bar1()
    g.e(f"v_lshrrev_b32 v{V_T0}, 4, v0")
    g.e(f"v_and_b32 v{V_T1}, 15, v0")
    g.e(f"v_lshlrev_b32 v{V_T0}, 9, v{V_T0}")
    g.e(f"v_lshl_add_u32 v{V_T0}, v{V_T1}, 4, v{V_T0}")
    g.e(f"s_lshl_b32 s{S_T0}, s{S_WAVE}, 11")
    g.e(f"v_add_u32 v{V_T0}, s{S_T0}, v{V_T0}")
    g.c("---- PV ----")
    done_wp = {0:set(),1:set()}
    for ui,(wp,half) in enumerate(units):
        firstacc = len(done_wp[half])==0
        if o.fineV:
            for k in range(4):
                g.wait(("V",wp,half,2*k+1))
                if ui==3 and k==3: stamp(g,o,4)
                for e in range(4): g.e(f"v_cvt_f32_i32 v{X+e}, v{slot_of[('V',wp,half,2*k)]+e}")
                for e in range(4): g.e(f"v_cvt_f32_i32 v{X+4+e}, v{slot_of[('V',wp,half,2*k+1)]+e}")
                for e in range(4): g.e(f"v_cvt_pk_bf16_f32 v{S+4*e+k}, v{X+e}, v{X+4+e}")
            for e in range(4):
                if e==0: g.e("s_nop 0")
                a_=ACC+16*half+4*e
                c = f"v[{CACC}:{CACC+3}]" if firstacc else f"v[{a_}:{a_+3}]"
                g.e(f"v_mfma_f32_16x16x32_bf16 v[{a_}:{a_+3}], v[{PA+4*wp}:{PA+4*wp+3}], v[{S+4*e}:{S+4*e+3}], {c}")
        else:
            g.wait(("V",wp,half,7))
            if ui==3: stamp(g,o,4)
            for e in range(4):
                for s_ in range(8):
                    g.e(f"v_cvt_f32_i32 v{X+s_}, v{slot_of[('V',wp,half,s_)]+e}")
                for k in range(4): g.e(f"v_cvt_pk_bf16_f32 v{R+k}, v{X+2*k}, v{X+2*k+1}")
                g.e("s_nop 1")
                a_=ACC+16*half+4*e
                c = f"v[{CACC}:{CACC+3}]" if firstacc else f"v[{a_}:{a_+3}]"
                g.e(f"v_mfma_f32_16x16x32_bf16 v[{a_}:{a_+3}], v[{PA+4*wp}:{PA+4*wp+3}], v[{R}:{R+3}], {c}")
        done_wp[half].add(wp)
        if o.early and o.bar1pos==ui: bar1()
        if len(done_wp[half])==2:
            g.c(f"compaction half {half}")
            g.e("s_nop 7" if not o.fineV else "s_nop 4")
            for e in range(4):
                a_=ACC+16*half+4*e
                g.e(f"v_permlane16_swap_b32 v{a_}, v{a_+1}")
                g.e(f"v_permlane16_swap_b32 v{a_+2}, v{a_+3}")
            for e in range(4):
                a_=ACC+16*half+4*e
                g.e(f"v_add_f32 v{X+e}, v{a_}, v{a_+1}")
                g.e(f"v_add_f32 v{X+4+e}, v{a_+2}, v{a_+3}")
            g.e("s_nop 0")
            for e in range(4):
                g.e(f"v_permlane32_swap_b32 v{X+e}, v{X+4+e}")
            g.e(f"ds_write_b128 v{V_T0}, v[{X}:{X+3}] offset:{LDS_O+256*half}")
            if ui!=3: g.e("s_nop 1")

    if "notail" in o.dbg:
        g.e("s_endpgm")
    def fast_calc():
        if fused and o.fast==1:
            g.e(f"v_readfirstlane_b32 s{S_T0}, v{o.V_RDY}")
            g.e(f"v_readfirstlane_b32 s{S_T1}, v{o.V_RDY+1}")
            g.e(f"s_cmp_ge_u32 s{S_XCC}, 4")
            g.e(f"s_cselect_b32 s{S_T0}, s{S_T1}, s{S_T0}")
            g.e(f"s_and_b32 s{S_T1}, s{S_XCC}, 3")
            g.e(f"s_lshl_b32 s{S_T1}, s{S_T1}, 3")
            g.e(f"s_lshr_b32 s{S_T0}, s{S_T0}, s{S_T1}")
            g.e(f"s_and_b32 s{S_T0}, s{S_T0}, 0xff")
            g.e(f"s_cmp_eq_u32 s{S_T0}, 32")
            g.e(f"s_cselect_b32 s{S_FAST}, 1, 0")
            g.e(f"s_cmp_ge_u32 s{S_XCC}, 8")
            g.e(f"s_cselect_b32 s{S_FAST}, 0, s{S_FAST}")
    def final_barrier():
        g.e("s_waitcnt lgkmcnt(0)")
        g.e("s_barrier")
        stamp(g,o,5)
    if o.early:
        early_tail(g, o, fast_calc, final_barrier)
        return
    g.c("---- tail roles ----")
    nrole = 4 if fused else 3
    if o.presetup:
        g.e(f"s_cmp_ge_u32 s{S_WAVE}, {nrole}")
        g.e("s_cbranch_scc1 L_idle")
        if fused:
            if o.rdylate:
                g.e(f"buffer_load_dwordx3 v[{o.V_RDY}:{o.V_RDY+2}], off, s[{SRD_D}:{SRD_D+3}], 0 sc1")
            g.e("s_waitcnt vmcnt(0)")
            fast_calc()
    else:
        if fused:
            if o.rdy4: g.e("s_waitcnt vmcnt(0)")
            else: g.wait("rdy")
            fast_calc()
        final_barrier()
        g.e(f"s_cmp_ge_u32 s{S_WAVE}, {nrole}")
        g.e("s_cbranch_scc1 L_idle")
    g.e(f"s_cmp_eq_u32 s{S_WAVE}, 2")
    g.e("s_cbranch_scc1 L_stats")
    if fused:
        g.e(f"s_cmp_eq_u32 s{S_WAVE}, 3")
        g.e("s_cbranch_scc1 L_cons")
    g.e(f"s_lshl_b32 s{S_T0}, s{S_WAVE}, 6")
    g.e(f"v_add_u32 v1, s{S_T0}, v0")
    g.e(f"v_lshrrev_b32 v5, 5, v1")
    g.e(f"v_lshlrev_b32 v5, 5, v5")
    g.e(f"v_lshlrev_b32 v2, 4, v1")
    g.e(f"v_lshrrev_b32 v6, 2, v1")
    g.e(f"v_and_b32 v4, 3, v1")
    g.e(f"v_lshlrev_b32 v6, {11 if o.compact else 12}, v6")
    g.e(f"v_lshl_add_u32 v4, v4, 4, v6")
    if o.presetup: final_barrier()
    g.e(f"ds_read_b128 v[8:11], v5 offset:{LDS_M}")
    g.e(f"ds_read_b128 v[12:15], v5 offset:{LDS_M+16}")
    for w in range(8):
        g.e(f"ds_read_b128 v[{16+4*w}:{19+4*w}], v2 offset:{LDS_O+2048*w}")
    g.e("s_waitcnt lgkmcnt(8)")
    g.e("v_max3_f32 v6, v8, v9, v10"); g.e("v_max3_f32 v7, v11, v12, v13"); g.e("v_max3_f32 v6, v6, v14, v15"); g.e("v_max_f32 v6, v6, v7")
    g.e(f"v_mul_f32 v6, s{S_C}, v6")
    for w in range(8): g.e(f"v_fma_f32 v{8+w}, v{8+w}, s{S_C}, -v6")
    for w in range(8): g.e(f"v_exp_f32 v{8+w}, v{8+w}")
    g.e("s_waitcnt lgkmcnt(7)")
    for e in range(4): g.e(f"v_mul_f32 v{16+e}, v{16+e}, v8")
    for w in range(1,8):
        g.e(f"s_waitcnt lgkmcnt({7-w})")
        for e in range(4): g.e(f"v_fmac_f32 v{16+e}, v{16+4*w+e}, v{8+w}")
    for e in range(4): g.e(f"v_min_u32 v{16+e}, -2, v{16+e}")
    publish(g,o,16,4,4,SRD_W,0,"L_po")
    stamp(g,o,6)
    if o.stamps: g.e("s_waitcnt vmcnt(0)")
    stamp(g,o,7); stamp_store(g,o)
    g.e("s_endpgm")
    g.e("L_stats:")
    if o.compact:
        g.e(f"v_and_b32 v1, 3, v0")
        g.e(f"v_lshlrev_b32 v4, 8, v1")
    else:
        g.e(f"v_lshrrev_b32 v1, 3, v0")
        g.e(f"v_and_b32 v1, 3, v1")
        g.e(f"v_lshlrev_b32 v4, 12, v0")
    g.e(f"v_lshlrev_b32 v2, 5, v1")
    g.e(f"v_lshlrev_b32 v3, {4 if o.shared else 2}, v1")
    if o.presetup: final_barrier()
    g.e(f"ds_read_b128 v[24:27], v2 offset:{LDS_M}")
    g.e(f"ds_read_b128 v[28:31], v2 offset:{LDS_M+16}")
    g.e(f"ds_read_b128 v[16:19], v2 offset:{LDS_Lr}")
    g.e(f"ds_read_b128 v[20:23], v2 offset:{LDS_Lr+16}")
    if o.shared: g.e(f"ds_read_b128 v[32:35], v3 offset:{LDS_B}")
    else: g.e(f"ds_read_b32 v32, v3 offset:{LDS_B}")
    g.e("s_waitcnt lgkmcnt(3)")
    g.e("v_max3_f32 v6, v24, v25, v26"); g.e("v_max3_f32 v7, v27, v28, v29"); g.e("v_max3_f32 v6, v6, v30, v31"); g.e("v_max_f32 v6, v6, v7")
    g.e(f"v_mul_f32 v7, s{S_C}, v6")
    for w in range(8): g.e(f"v_fma_f32 v{24+w}, v{24+w}, s{S_C}, -v7")
    for w in range(8): g.e(f"v_exp_f32 v{24+w}, v{24+w}")
    g.e("s_waitcnt lgkmcnt(0)")
    if o.shared:
        g.e("v_add_f32 v32, v32, v33"); g.e("v_add_f32 v34, v34, v35"); g.e("v_add_f32 v32, v32, v34")
    g.e("v_sub_f32 v6, v6, v32")
    g.e("v_mul_f32 v16, v16, v24")
    g.e("v_mul_f32 v18, v18, v26")
    g.e("v_fmac_f32 v16, v17, v25")
    g.e("v_fmac_f32 v18, v19, v27")
    g.e("v_fmac_f32 v16, v20, v28")
    g.e("v_fmac_f32 v18, v21, v29")
    g.e("v_fmac_f32 v16, v22, v30")
    g.e("v_fmac_f32 v18, v23, v31")
    g.e(f"v_mul_f32 v17, s{S_C}, v6")
    g.e("v_add_f32 v16, v16, v18")
    g.e("v_min_u32 v17, -2, v17")
    g.e("v_min_u32 v16, -2, v16")
    if o.compact:
        g.e("s_mov_b64 exec, 15")
        publish(g,o,16,2,4,SRD_T,0,"L_ps")
    else:
        g.e("v_mov_b32 v18, 0"); g.e("v_mov_b32 v19, 0")
        g.e("s_mov_b32 exec_hi, 0")
        publish(g,o,16,4,4,SRD_W,64,"L_ps")
    stamp(g,o,6); stamp(g,o,7); stamp_store(g,o)
    g.e("s_endpgm")
    if fused:
        g.e("L_cons:")
        if "nocons" in o.dbg:
            final_barrier(); g.e("s_endpgm")
        consumer_setup(g,o)
        consumer(g, True, "L_c", o, final_barrier if o.presetup else None)
        if o.stamps: g.e("s_waitcnt vmcnt(0)")
        stamp(g,o,7); stamp_store(g,o)
        g.e("s_endpgm")
    g.e("L_idle:")
    if o.presetup: final_barrier()
    stamp(g,o,6); stamp(g,o,7); stamp_store(g,o)
    g.e("L_end:")
    g.e("s_endpgm")

def combine_kernel(g, o):
    kernel_begin(g, o.comb_name)
    g.e("s_cmp_ge_u32 s2, 256")
    g.e("s_cbranch_scc1 L2_end")
    g.e(f"s_load_dwordx2 s[{S_OUT}:{S_OUT+1}], s[0:1], 56")
    g.e(f"s_load_dwordx2 s[{S_WS}:{S_WS+1}], s[0:1], 72")
    g.e("s_waitcnt lgkmcnt(0)")
    consumer_setup(g,o)
    st=o.stamps; o.stamps=0
    consumer(g, False, "L2_c", o)
    o.stamps=st
    g.e("L2_end:")
    g.e("s_endpgm")

def strip_compute(L):
    out=[]; on=False
    for l in L:
        if l.startswith("; ---- q' ----") or l.startswith("; ---- QK ----"): on=True
        if l.startswith("; ---- tail roles"): on=False
        if on and (l.startswith("v_") or l.startswith("ds_") or l.startswith("s_nop")): continue
        out.append(l)
    return out

def build(o):
    g = G()
    o.lds = LDS_SIZE1 if o.shared else LDS_SIZE0
    g.L.append(HEADER.rstrip("\n"))
    if o.fused:
        o.main_name = KN
        g.e(f"; @launch grid=(256,1,1) block=(512,1,1) lds={o.lds}")
    else:
        o.main_name = "kvdec_main_kernel"
        o.comb_name = "kvdec_combine_kernel"
        g.e(f"; @launch kernel={o.main_name} grid=(256,1,1) block=(512,1,1) lds={o.lds}")
        g.e(f"; @launch kernel={o.comb_name} grid=(256,1,1) block=(64,1,1) lds=0")
    if o.fused:
        for l in DOC.strip("\n").split("\n"): g.e(("; " + l).rstrip())
    g.e('.amdgcn_target "amdgcn-amd-amdhsa--gfx950"')
    g.e(".text")
    main_kernel(g, o)
    if not o.fused: combine_kernel(g, o)
    g.e('.section .rodata,"a"')
    kernel_desc(g, o.main_name, RING + 4*o.nslots)
    if not o.fused: kernel_desc(g, o.comb_name, 40)
    if "nocomp" in o.dbg: g.L = strip_compute(g.L)
    return "\n".join(g.L) + "\n"

def parse(argv):
    ap = argparse.ArgumentParser()
    ap.add_argument("out")
    ap.add_argument("--fused", type=int, default=1)
    ap.add_argument("--nslots", type=int, default=38)
    ap.add_argument("--ld", default="nt")
    ap.add_argument("--stamps", type=int, default=0)
    ap.add_argument("--xmap", type=int, default=0)
    ap.add_argument("--bar0", type=int, default=1)
    ap.add_argument("--korder", default="ju")
    ap.add_argument("--vunits", default="w")
    ap.add_argument("--kfirst", type=int, default=0)
    ap.add_argument("--clearpos", default="first")
    ap.add_argument("--tlbw", type=int, default=0)
    ap.add_argument("--fast", type=int, default=0)
    ap.add_argument("--outfl", default="")
    ap.add_argument("--vsearly", type=int, default=0)
    ap.add_argument("--rdy4", type=int, default=0)
    ap.add_argument("--compact", type=int, default=0)
    ap.add_argument("--presetup", type=int, default=0)
    ap.add_argument("--clearwave", type=int, default=0)
    ap.add_argument("--kpre", type=int, default=0)
    ap.add_argument("--fineV", type=int, default=0)
    ap.add_argument("--shared", type=int, default=0)
    ap.add_argument("--dbg", default="")
    ap.add_argument("--early", type=int, default=0)
    ap.add_argument("--outwarm", type=int, default=0)
    ap.add_argument("--prio", type=int, default=0)
    ap.add_argument("--rdylate", type=int, default=0)
    ap.add_argument("--prioclear", type=int, default=0)
    ap.add_argument("--bar1pos", type=int, default=-1)
    ap.add_argument("--vsnt", default="")
    ap.add_argument("--inbox", type=int, default=0)
    o = ap.parse_args(argv)
    o.ldflags = o.ld
    o.V_RDY = None
    return o

if __name__ == "__main__":
    o = parse(sys.argv[1:])
    open(o.out, "w").write(build(o))
```
